```python
import torch

def _softmax(x, axis=-1):
    return torch.softmax(x, dim=axis)
def _gelu(x):
    return torch.nn.functional.gelu(x, approximate="tanh")
def _silu(x):
    return torch.nn.functional.silu(x)
def _sigmoid(x):
    return torch.sigmoid(x)
def _layernorm(x, axis=-1, eps=1e-5):
    m = x.mean(dim=axis, keepdim=True)
    v = x.var(dim=axis, keepdim=True, unbiased=False)
    return (x - m) / torch.sqrt(v + eps)
def _scatter_add(tgt, idx, src, axis=0):
    return tgt.clone().index_add_(axis, idx, src)
def _segment_sum(src, seg, n):
    out = torch.zeros((n,) + src.shape[1:], dtype=src.dtype)
    return out.index_add_(0, seg, src)
def _pad(x, pw):
    flat = tuple(v for pair in reversed(pw) for v in pair)
    return torch.nn.functional.pad(x, flat)

kernel_name = 'standalone__window_attn_swin_v2__vision'

def setup_inputs():

    _w = (lambda a: (lambda t: t.to(torch.bfloat16) if t.is_floating_point() else t)(torch.as_tensor(a)))
    win = 7
    H = W = (512 // win) * win
    C = 192
    nh = 4
    shift = win // 2
    coords = torch.stack(torch.meshgrid(torch.arange(win), torch.arange(win), indexing="ij"), -1).reshape(-1, 2)
    rel = coords[:, None, :] - coords[None, :, :]
    rel_idx = ((rel[..., 0] + win - 1) * (2 * win - 1) + (rel[..., 1] + win - 1)).to(torch.int64)
    tab = torch.stack(torch.meshgrid(torch.arange(1 - win, win), torch.arange(1 - win, win), indexing="ij"), -1).reshape(-1, 2).to(float)
    tab = (lambda _x: torch.sign(torch.as_tensor(_x)))(tab) * (lambda _x: torch.log1p(torch.as_tensor(_x)))(torch.abs(tab))
    img = torch.zeros((H, W), dtype=torch.int64)
    cnt = 0
    for hs in (slice(0, H - win), slice(H - win, H - shift), slice(H - shift, H)):
        for ws in (slice(0, W - win), slice(W - win, W - shift), slice(W - shift, W)):
            img[hs, ws] = cnt; cnt += 1
    mw = img.reshape(H // win, win, W // win, win).permute(0, 2, 1, 3).reshape(-1, win * win)
    mask = (mw[:, :, None] != mw[:, None, :]).to(float) * (-100.0)
    return {
        "x": _w((lambda *s: torch.randn(*s, dtype=torch.bfloat16) * 0.05)(1, H, W, C)),
        "wqkv": _w((lambda *s: torch.randn(*s, dtype=torch.bfloat16) * 1.6)(C, 3 * C)),
        "wo": _w((lambda *s: torch.randn(*s, dtype=torch.bfloat16) * 0.05)(C, C)),
        "logit_scale": _w((lambda *s: torch.randn(*s, dtype=torch.bfloat16) * 1.6)(nh)),
        "cpb_w1": _w((lambda *s: torch.randn(*s, dtype=torch.bfloat16) * 1.6)(2, 4 * nh)),
        "cpb_w2": _w((lambda *s: torch.randn(*s, dtype=torch.bfloat16) * 1.6)(4 * nh, nh)),
        "rel_coords": _w(tab),
        "rel_idx": _w(rel_idx),
        "attn_mask": _w(mask),
    }

def reference(x, wqkv, wo, logit_scale, cpb_w1, cpb_w2, rel_coords, rel_idx, attn_mask):
    B, H, W, C = x.shape
    win = 7
    nh = 4
    hd = C // nh
    shift = win // 2
    ww = win * win
    nH, nW = H // win, W // win
    xs = torch.roll(x, (-shift, -shift), (1, 2))
    xw = (lambda x, *d: x.permute(*d))(xs.reshape(B, nH, win, nW, win, C), 0, 1, 3, 2, 4, 5).reshape(B * nH * nW, ww, C)
    qkv = (lambda x, *d: x.permute(*d))((xw @ wqkv).reshape(B * nH * nW, ww, 3, nh, hd), 2, 0, 3, 1, 4)
    q, k, v = qkv[0], qkv[1], qkv[2]
    qn = q * (torch.einsum("bhqd,bhqd->bhq", q, q)[..., None] + 1e-12) ** -0.5
    kn = k * (torch.einsum("bhkd,bhkd->bhk", k, k)[..., None] + 1e-12) ** -0.5
    logits = torch.einsum("bhqd,bhkd->bhqk", qn, kn)
    tau = torch.exp(torch.clip(logit_scale, -100.0, 4.6052))
    logits = logits * tau[None, :, None, None]
    hcpb = rel_coords @ cpb_w1
    hcpb = torch.where(hcpb > 0, hcpb, hcpb * 0)
    bias_tab = 16.0 * _sigmoid(hcpb @ cpb_w2)
    bias = (lambda x, *d: x.permute(*d))(bias_tab[rel_idx], 2, 0, 1)
    logits = logits.reshape(B, nH * nW, nh, ww, ww) + bias[None, None, :, :, :] + attn_mask[None, :, None, :, :]
    p = _softmax(logits.reshape(B * nH * nW, nh, ww, ww), axis=-1)
    o = (lambda x, *d: x.permute(*d))(torch.einsum("bhqk,bhkd->bhqd", p, v), 0, 2, 1, 3).reshape(B * nH * nW, ww, C) @ wo
    o = (lambda x, *d: x.permute(*d))(o.reshape(B, nH, nW, win, win, C), 0, 1, 3, 2, 4, 5).reshape(B, H, W, C)
    o = torch.roll(o, (shift, shift), (1, 2))
    return _layernorm(o, axis=-1)
```

```python
import random
import re

TRANS = ('v_exp_', 'v_log_', 'v_rcp_', 'v_rsq_', 'v_sqrt_', 'v_sin_', 'v_cos_')
SCC_DEF = ('s_add_', 's_sub_', 's_and_', 's_or_', 's_xor_', 's_lshl_', 's_lshr_', 's_ashr_', 's_cmp_', 's_addc',
           's_subb', 's_min_', 's_max_', 's_andn2', 's_not_', 's_bfe_', 's_addk', 's_cmpk', 's_bitcmp')
SCC_USE = ('s_cselect', 's_cbranch_scc', 's_addc', 's_subb')

_REG = re.compile(r'^-?(?:abs\()?(%[A-Za-z_][A-Za-z0-9_]*(?:\.\d+(?::\d+)?)?|[vas]\d+|[vas]\[\d+:\d+\]|vcc|exec|exec_lo|exec_hi|m0|vcc_lo|vcc_hi)\)?$')
_SYM = re.compile(r'%([A-Za-z_][A-Za-z0-9_]*)(?:\.(\d+)(?::(\d+))?)?')


class Ctx:
    def __init__(self):
        self.size = {}
        self.phys = {}

    def new(self, name, n=1, phys=None):
        assert name not in self.size or self.size[name] == n, name
        self.size[name] = n
        if phys is not None:
            self.phys[name] = phys
        return '%' + name

    def keys(self, tok):
        m = _REG.match(tok)
        if not m:
            return []
        t = m.group(1)
        if t[0] == '%':
            m = _SYM.match(t)
            name = m.group(1)
            n = self.size[name]
            if m.group(2) is None:
                lo, hi = 0, n - 1
            else:
                lo = int(m.group(2))
                hi = int(m.group(3)) if m.group(3) else lo
            assert hi < n, tok
            return [('%', name, i) for i in range(lo, hi + 1)]
        if t in ('vcc', 'vcc_lo', 'vcc_hi'):
            return ['vcc']
        if t.startswith('exec'):
            return ['exec']
        if t == 'm0':
            return ['m0']
        if '[' in t:
            lo, hi = map(int, t[2:-1].split(':'))
            return [(t[0], i) for i in range(lo, hi + 1)]
        return [(t[0], int(t[1:]))]

    def subst(self, text):
        def rep(m):
            name = m.group(1)
            bank, base = self.phys[name]
            if m.group(2) is None:
                lo, hi = 0, self.size[name] - 1
            else:
                lo = int(m.group(2))
                hi = int(m.group(3)) if m.group(3) else lo
            if lo == hi:
                return f'{bank}{base + lo}'
            assert (base + lo) % 2 == 0, (text, name, base, lo)
            return f'{bank}[{base + lo}:{base + hi}]'
        return _SYM.sub(rep, text)


class Ins:
    def __init__(self, ctx, text, prio=None, after=(), full=False, grp=None, lat=None, tag=''):
        self.text = text
        self.prio = prio
        self.after = list(after)
        self.grp = grp
        self.lat = lat
        self.tag = tag
        self.defs, self.uses = [], []
        self.A = self.B = self.C = ()
        self.data = ()
        self.dpp_src = ()
        self.parse(ctx, full)

    def parse(self, ctx, full):
        s = self.text.split(';')[0].strip()
        op, _, rest = s.partition(' ')
        self.op = op
        parts = [p.strip() for p in rest.split(',')] if rest.strip() else []
        mods = ''
        ops = []
        for i, p in enumerate(parts):
            if ' ' in p:
                head, _, tail = p.partition(' ')
                ops.append(head)
                mods = tail + ' ' + ','.join(parts[i + 1:])
                break
            ops.append(p)
        K = [ctx.keys(o) for o in ops]
        flat = lambda L: [k for x in L for k in x]
        self.dur = 4
        if op.endswith(':'):
            self.kind = 'label'
        elif op.startswith('v_mfma'):
            self.kind = 'mfma'
            self.defs = K[0]
            self.A, self.B, self.C = K[1], K[2], K[3]
            self.uses = flat(K[1:])
        elif op.startswith('v_'):
            self.kind = 'valu'
            self.trans = op.startswith(TRANS)
            if self.trans or 'permlane' in op or op.startswith('v_mul_lo') or op.startswith('v_mul_hi'):
                self.dur = 8
            if 'permlane' in op:
                self.defs = flat(K)
                self.uses = flat(K)
                self.dpp_src = self.uses
            else:
                self.defs = K[0]
                self.uses = flat(K[1:])
                if op.startswith('v_fmac') or op.startswith('v_writelane'):
                    self.uses += K[0]
                if op.endswith('_dpp'):
                    self.dpp_src = K[1]
                    if 'row_mask:0xf' not in mods and not full:
                        self.uses += K[0]
        elif op.startswith('ds_read') or op.startswith('ds_bpermute'):
            self.kind = 'dsr'
            self.defs = K[0]
            self.uses = flat(K[1:])
        elif op.startswith('ds_write'):
            self.kind = 'dsw'
            self.uses = flat(K)
            self.dur = 4 + 4 * (len(self.uses) - 1)
        elif op.startswith('buffer_load'):
            if re.search(r'\blds\b', mods):
                self.kind = 'dma'
                self.uses = flat(K) + ['m0']
            else:
                self.kind = 'vld'
                self.defs = K[0]
                self.uses = flat(K[1:])
        elif op.startswith('buffer_store'):
            self.kind = 'vst'
            self.uses = flat(K)
            self.data = K[0]
        elif op.startswith('s_load') or op.startswith('s_memtime') or op.startswith('s_memrealtime'):
            self.kind = 'smem'
            self.defs = K[0]
            self.uses = flat(K[1:])
        elif op == 's_waitcnt':
            self.kind = 'wait'
        elif op == 's_barrier':
            self.kind = 'bar'
        elif op == 's_nop':
            self.kind = 'nop'
            self.dur = 4 * (int(ops[0]) + 1)
        elif op.startswith('s_'):
            self.kind = 'salu'
            if op.startswith(('s_cmp', 's_cbranch', 's_branch', 's_endpgm', 's_setprio', 's_bitcmp')):
                self.uses = flat(K)
            else:
                self.defs = K[0]
                self.uses = flat(K[1:])
            if op.startswith(SCC_DEF):
                self.defs = self.defs + ['scc']
            if op.startswith(SCC_USE):
                self.uses = self.uses + ['scc']
        else:
            raise ValueError(self.text)
        if self.kind in ('valu', 'mfma', 'dsr', 'dsw', 'dma', 'vld', 'vst'):
            self.uses = self.uses + ['exec']

    @property
    def states(self):
        if self.kind == 'label':
            return 0
        if self.kind == 'nop':
            return self.dur // 4
        return 1


MEM = ('dsr', 'dsw', 'dma', 'vld', 'vst')


def is_vreg(k):
    return isinstance(k, tuple) and k[0] in ('%', 'v', 'a')


def is_sreg(k):
    return k == 'vcc' or (isinstance(k, tuple) and k[0] == 's')


def need_states(p, c):
    n = 0
    pd, cu, cd = set(p.defs), set(c.uses), set(c.defs)
    raw = pd & cu
    if p.kind == 'mfma':
        if c.kind == 'mfma':
            if pd & (set(c.A) | set(c.B)):
                n = max(n, 8)
            if pd & set(c.C) and (list(p.defs) != list(c.C) or p.op != c.op):
                n = max(n, 6)
        elif (raw or pd & cd) and c.kind in ('valu',) + MEM:
            n = max(n, 8)
        if c.kind == 'valu' and set(p.C) & cd:
            n = max(n, 3)
    elif p.kind == 'valu':
        vraw = [k for k in raw if is_vreg(k)]
        sraw = [k for k in raw if is_sreg(k)]
        if c.kind == 'mfma' and vraw:
            n = max(n, 2)
        if c.kind == 'valu':
            if vraw and p.trans and not c.trans:
                n = max(n, 1)
            if pd & set(c.dpp_src):
                n = max(n, 2)
            if vraw and c.op.startswith(('v_readfirstlane', 'v_readlane')):
                n = max(n, 1)
            if sraw:
                n = max(n, 4 if c.op.startswith(('v_readlane', 'v_writelane')) else 2)
        if c.kind in MEM and vraw and p.trans:
            n = max(n, 1)
        if c.kind in ('dma', 'vld', 'vst') and sraw:
            n = max(n, 5)
        if c.kind in ('salu', 'smem') and sraw:
            n = max(n, 2)
    elif p.kind == 'salu':
        if 'm0' in pd and c.kind == 'dma':
            n = max(n, 1)
    elif p.kind == 'vst':
        if len(p.data) >= 3 and set(p.data) & cd:
            n = max(n, 2)
    if p.kind in ('dsr', 'vld') and c.kind == 'valu' and pd & set(c.dpp_src):
        n = max(n, 2)
    return n


def pad_hazards(ctx, seq, pre=()):
    out = list(pre)
    base = len(out)
    added = 0
    for c in seq:
        if c.kind != 'label':
            gap = 0
            need = 0
            for p in reversed(out):
                if gap >= 9:
                    break
                need = max(need, need_states(p, c) - gap)
                gap += p.states
            if need > 0:
                out.append(Ins(ctx, f's_nop {need - 1}', tag='pad'))
                added += need
        out.append(c)
    return out[base:], added


class Timer:
    def __init__(self):
        self.t = 0
        self.vec = 0
        self.pipe = 0
        self.valu_end = -100
        self.mblock = 0
        self.dsblock = 0

    def when(self, i):
        k = i.kind
        if k == 'mfma':
            return max(self.t, self.vec, self.pipe, self.mblock)
        if k == 'valu':
            return max(self.t, self.vec)
        if k in ('dsr', 'dsw'):
            return max(self.t, self.vec, self.valu_end + 8, self.dsblock)
        if k in MEM:
            return max(self.t, self.vec, self.valu_end + 8)
        return self.t

    def issue(self, i):
        w = self.when(i)
        k = i.kind
        if k == 'label':
            return w
        if k == 'mfma':
            self.t, self.vec, self.pipe = w + 4, w + 8, w + 16
        elif k == 'valu':
            self.t = self.vec = self.valu_end = w + i.dur
        elif k in MEM:
            self.t = self.vec = w + i.dur
            if k == 'vst':
                self.mblock = w + 4 + 4 * len(i.data)
            if k == 'dsw':
                self.dsblock = w + {8: 20, 12: 28, 16: 44, 20: 56}[i.dur]
        else:
            self.t = w + i.dur
        return w


class Block:
    def __init__(self, ctx, name, lds_lat=128):
        self.ctx = ctx
        self.name = name
        self.ins = []
        self.lds_lat = lds_lat
        self.cur = 0.0

    def __call__(self, text, **kw):
        i = Ins(self.ctx, text, **kw)
        if i.prio is None:
            i.prio = self.cur
        i.seq = len(self.ins)
        self.ins.append(i)
        return i

    def build_deps(self):
        lastdef, users = {}, {}
        n = len(self.ins)
        self.pred = [dict() for _ in range(n)]
        for c in self.ins:
            P = self.pred[c.seq]
            for k in c.uses:
                if k in lastdef:
                    P[lastdef[k].seq] = 'raw'
            for k in c.defs:
                if k in lastdef:
                    P.setdefault(lastdef[k].seq, 'waw')
                for u in users.get(k, ()):
                    if u is not c:
                        P.setdefault(u.seq, 'war')
            for a in c.after:
                assert a.seq != c.seq
                P.setdefault(a.seq, 'ord')
            for k in c.uses:
                users.setdefault(k, []).append(c)
            for k in c.defs:
                lastdef[k] = c
                users[k] = []

    def schedule(self, inorder=False, verbose=False):
        self.build_deps()
        ctx = self.ctx
        n = len(self.ins)
        succ = [[] for _ in range(n)]
        left = [len(p) for p in self.pred]
        for c in range(n):
            for p in self.pred[c]:
                succ[p].append(c)
        ready = [i for i in range(n) if left[i] == 0]
        out = []
        pos = {}
        state_at = []
        nstates = 0
        tm = Timer()
        ds = []
        dsidx = {}
        covered = -1
        stall = 0

        def needs_ds(c):
            m = -1
            for p, why in self.pred[c.seq].items():
                pi = self.ins[p]
                if pi.kind == 'dsr' and (why in ('raw', 'waw') or c.kind == 'bar'):
                    m = max(m, dsidx[p])
                elif pi.kind == 'dsw' and c.kind == 'bar':
                    m = max(m, dsidx[p])
            return m

        def hazard_ok(c):
            for p, back in self.entry:
                if nstates + back < need_states(p, c):
                    return False
            for p in self.pred[c.seq]:
                ns = need_states(self.ins[p], c)
                if ns and nstates - state_at[pos[p]] - 1 < ns:
                    return False
            return True

        def ds_done_time(j):
            i, t = ds[j]
            return t + (i.lat if i.lat is not None else self.lds_lat)

        def emit(i):
            nonlocal nstates
            w = tm.issue(i)
            i.time = w
            state_at.append(nstates)
            nstates += i.states
            out.append(i)
            return w

        def emit_wait(target):
            nonlocal covered, stall
            j = target
            while j + 1 < len(ds) and ds_done_time(j + 1) <= tm.t:
                j += 1
            cnt = len(ds) - 1 - j
            if cnt > 15:
                cnt = 15
                j = len(ds) - 1 - 15
            done = max(ds_done_time(x) for x in range(covered + 1, j + 1))
            w = Ins(ctx, f's_waitcnt lgkmcnt({cnt})', tag='w')
            emit(w)
            if done > tm.t:
                stall += done - tm.t
                tm.t = done
            covered = j

        def commit(c):
            w = emit(c)
            pos[c.seq] = len(out) - 1
            if c.kind in ('dsr', 'dsw'):
                dsidx[c.seq] = len(ds)
                ds.append((c, w))
            ready.remove(c.seq)
            for s in succ[c.seq]:
                left[s] -= 1
                if left[s] == 0:
                    ready.append(s)

        key = lambda c: (c.prio, c.seq)
        while ready:
            cands = sorted((self.ins[i] for i in ready), key=key)
            if inorder:
                c = min((self.ins[i] for i in ready), key=lambda x: x.seq)
                t = needs_ds(c)
                if t > covered:
                    emit_wait(t)
                while not hazard_ok(c):
                    emit(Ins(ctx, 's_nop 0', tag='pad'))
                commit(c)
                continue
            avail = [c for c in cands if needs_ds(c) <= covered and hazard_ok(c)]
            tv = max(tm.t, tm.vec)
            shadow = tm.t < tm.vec
            landed = covered + 1 < len(ds) and ds_done_time(covered + 1) <= tm.t
            pending_reads = [j for j in range(covered + 1, len(ds)) if ds[j][0].kind == 'dsr' and ds_done_time(j) <= tm.t]
            blocked = [c for c in cands if needs_ds(c) > covered]
            sal = [c for c in avail if c.kind in ('salu', 'wait', 'bar', 'smem', 'nop')]
            if shadow:
                want = [needs_ds(c) for c in blocked if ds_done_time(needs_ds(c)) <= tm.t]
                if want:
                    emit_wait(min(want))
                    continue
                if sal:
                    commit(sal[0])
                    continue
                if landed and pending_reads:
                    emit_wait(pending_reads[0])
                    continue
            mf = [c for c in avail if c.kind == 'mfma']
            mem = [c for c in avail if c.kind in MEM and tm.when(c) <= tv]
            va = [c for c in avail if c.kind == 'valu']
            if mf and tm.when(mf[0]) <= tv:
                commit(mf[0])
                continue
            room = (tm.when(mf[0]) - tv) if mf else 1000
            if mem:
                fit = [c for c in mem if c.dur <= room]
                if fit:
                    commit(fit[0])
                    continue
                if room >= 8:
                    commit(mem[0])
                    continue
            if va:
                fit = [c for c in va if c.dur <= room]
                if fit and (fit[0] is va[0] or fit[0].prio - va[0].prio < 1e9):
                    commit(fit[0])
                    continue
                if not mf or self.overfill:
                    commit(va[0])
                    continue
            if mf:
                if sal:
                    commit(sal[0])
                    continue
                commit(mf[0])
                continue
            if sal:
                commit(sal[0])
                continue
            mem2 = [c for c in avail if c.kind in MEM]
            want = [needs_ds(c) for c in blocked if ds_done_time(needs_ds(c)) <= tm.t]
            if want:
                emit_wait(min(want))
                continue
            if mem2:
                commit(mem2[0])
                continue
            hz = [c for c in cands if needs_ds(c) <= covered]
            if hz:
                emit(Ins(ctx, 's_nop 0', tag='pad'))
                continue
            emit_wait(min(needs_ds(c) for c in blocked))
        assert len(pos) == n, 'dependency cycle'
        self.open_reads = [ds[j][0] for j in range(covered + 1, len(ds)) if ds[j][0].kind == 'dsr']
        self.out = out
        self.cycles = max(tm.t, tm.vec)
        self.stall = stall
        return out

    overfill = False
    entry = ()


def occupancy(ctx, seq, cyclic, live_out=(), live_in=()):
    n = len(seq)
    occ = {}
    live = set(live_out)
    N = 2 * n

    def mark(k, a, b):
        m = occ.get(k, 0)
        for x in range(a, b + 1):
            if cyclic:
                m |= 1 << (x % N)
            elif x < N:
                m |= 1 << x
        occ[k] = m

    passes = 2 if cyclic else 1
    for ps in range(passes):
        for p in range(n - 1, -1, -1):
            i = seq[p]
            last = ps == passes - 1
            d = [k for k in i.defs if k[0] == '%']
            u = [k for k in i.uses if k[0] == '%']
            if last:
                for k in live:
                    mark(k, 2 * p + 1, 2 * p + 1)
                for k in d:
                    early = i.kind in ('mfma', 'dsr', 'vld')
                    mark(k, 2 * p + (0 if early else 1), 2 * p + 1)
                    if i.kind == 'mfma':
                        mark(k, 2 * p, 2 * (p + 9))
                if i.kind == 'vst':
                    for k in i.data:
                        if k[0] == '%':
                            mark(k, 2 * p, 2 * (p + 3))
                if i.kind == 'mfma':
                    for k in i.C:
                        if k[0] == '%':
                            mark(k, 2 * p, 2 * (p + 4))
            live -= set(d)
            live |= set(u)
            if last:
                for k in live:
                    mark(k, 2 * p, 2 * p)
    if not cyclic:
        extra = live - set(live_in)
        assert not extra, f'undefined at block entry: {sorted(extra)[:8]}'
    return occ, live


def dead_read_cover(ctx, seq, occ, cyclic):
    n = len(seq)
    N = 2 * n
    for p, i in enumerate(seq):
        if i.kind not in ('dsr', 'vld'):
            continue
        d = [k for k in i.defs if k[0] == '%']
        if not d:
            continue
        q = p + 1
        while q < p + n:
            if not cyclic and q >= n:
                break
            if set(seq[q % n].uses) & set(d):
                break
            q += 1
        for k in d:
            for x in range(2 * p, 2 * q + 1):
                if cyclic or x < N:
                    occ[k] |= 1 << (x % N)


def allocate(ctx, seq, pool, cyclic, live_out=(), live_in=(), tries=400, seed=0):
    occ, entry = occupancy(ctx, seq, cyclic, live_out, live_in)
    dead_read_cover(ctx, seq, occ, cyclic)
    names = sorted({k[1] for k in occ})
    N = 2 * len(seq)
    poolset = set(pool)
    fixed = {r: 0 for r in pool}
    todo = []
    for nm in names:
        if nm in ctx.phys:
            bank, base = ctx.phys[nm]
            if bank == 'v':
                for e in range(ctx.size[nm]):
                    if base + e in poolset:
                        m = occ.get(('%', nm, e), 0)
                        assert not fixed[base + e] & m, f'pinned overlap {nm}'
                        fixed[base + e] |= m
        else:
            todo.append(nm)
    press = [0] * N
    for k, m in occ.items():
        if k[1] in todo or (ctx.phys[k[1]][0] == 'v' and ctx.phys[k[1]][1] + k[2] in poolset):
            for x in range(N):
                if m >> x & 1:
                    press[x] += 1
    masks = {nm: [occ.get(('%', nm, e), 0) for e in range(ctx.size[nm])] for nm in todo}
    length = {nm: sum(bin(m).count('1') for m in masks[nm]) for nm in todo}

    def start(nm):
        m = 0
        for x in masks[nm]:
            m |= x
        if cyclic and m & 1 and m >> (N - 1) & 1:
            return -1
        return (m & -m).bit_length()

    rng = random.Random(seed)
    for t in range(tries):
        if t % 2 == 0:
            order = sorted(todo, key=lambda nm: (start(nm) + (rng.random() * 40 if t else 0), -ctx.size[nm]))
        else:
            order = sorted(todo, key=lambda nm: -length[nm] * (0.5 + rng.random()))
        busy = dict(fixed)
        res = {}
        ok = True
        for nm in order:
            sz = ctx.size[nm]
            opts = []
            for b in pool:
                if sz > 1 and b % 2:
                    continue
                if all((b + e) in poolset and not busy[b + e] & masks[nm][e] for e in range(sz)):
                    opts.append(b)
            if not opts:
                ok = False
                break
            if sz >= 4:
                al = [b for b in opts if (b - pool[0]) % 4 == 0]
                opts = al or opts
                b = opts[0]
            else:
                b = opts[-1]
            res[nm] = b
            for e in range(sz):
                busy[b + e] |= masks[nm][e]
        if ok:
            for nm, b in res.items():
                ctx.phys[nm] = ('v', b)
            return max(press), press, entry
    raise RuntimeError(f'allocation failed, max pressure {max(press)} of {len(pool)}')


def physical(ctx, seq):
    out = []
    for i in seq:
        j = Ins(ctx, ctx.subst(i.text), tag=i.tag)
        out.append(j)
    return out


def estimate(seq):
    tm = Timer()
    for i in seq:
        i.time = tm.issue(i)
    return max(tm.t, tm.vec)
```

```python
from parts import *


def head_part(b, cfg, after=()):
    rd = []
    for s in range(6):
        aft = [after[s]] if after else []
        rd.append(xread(b, f'xf0{s}', 0, s, L_X, after=aft, prio=-500))
    ch = []
    for jd in range(3):
        ch += proj_chain(b, f'ka0{jd}', WK, lambda s: f'%xf0{s}', jd, False)
    for jd in range(cfg['head_q']):
        ch += proj_chain(b, f'qa0{jd}', WQ, lambda s: f'%xf0{s}', jd, False)
    if cfg['head_ss']:
        sumsq(b, 'ssk0', [f'ka0{jd}' for jd in range(3)], f's{S_EPSQ}')
    return rd, ch


def build_loop(ctx, cfg, safe, label):
    b = Block(ctx, 'loop', lds_lat=cfg['lds_lat'])
    c = ctx
    LEAD = cfg['lead']
    for s in range(6):
        c.new(f'xf0{s}', 4)
    for jd in range(3):
        c.new(f'ka0{jd}', 4)
        c.new(f'qa0{jd}', 4)
        for j in range(3):
            c.new(f'y{j}{jd}', 4)
    c.new('ssk0', 1)

    b.cur = 0
    cmp0 = b(f's_cmp_ge_u32 s{S_IT}, 2')
    b(f's_cselect_b32 s{S_SRDO + 2}, s{S_NB}, 0')
    st0 = c.new('st0', 4)
    st1 = c.new('st1', 4)
    b(f'ds_read_b128 {st0}, v{V_OR} offset:{L_STAT}', prio=-600)
    stat_rd = b(f'ds_read_b128 {st1}, v{V_OR} offset:{L_STAT + 1024}', prio=-600)
    lnr = c.new('lnr', 4)
    b(f'{M32} {lnr}, {vr(V_SEL, 4)}, {st0}, 0', prio=-900)
    b(f'{M32} {lnr}, {vr(V_SEL, 4)}, {st1}, {lnr}', prio=-900)
    stores = []
    b.cur = cfg['ln_prio'][0]
    rs = [ln_scale(b, lnr, j, f'rs{j}') for j in range(3)]
    for j in range(3):
        b.cur = cfg['ln_prio'][j]
        stores += ln_finish(b, lambda jc: f'y{j}{jc}', rs[j], f'v{V_ST4 + j}', f'v{V_ST2 + j}', f's{S_OFF + 4}', f'yp{j}', cfg['st_flags'])

    mf = []
    xrd = []
    b.cur = 0
    for jd in range(3):
        c.new(f'v0{jd}', 4)
        c.new(f'v1{jd}', 4)
    for j in range(3):
        xf = lambda s: f'%xf{j}{s}'
        if j > 0:
            for s in range(6):
                k = len(mf) + s - LEAD
                xrd.append(xread(b, f'xf{j}{s}', j, s, L_X, after=[mf[min(k, len(mf) - 1)]], prio=-500))
            for jd in range(3):
                mf += proj_chain(b, f'ka{j}{jd}', WK, xf, jd, False)
        if j > 0 or not cfg['head_ss']:
            sumsq(b, f'ssk{j}', [f'ka{j}{jd}' for jd in range(3)], f's{S_EPSQ}')
        for jd in range(cfg['head_q'] if j == 0 else 0, 3):
            mf += proj_chain(b, f'qa{j}{jd}', WQ, xf, jd, False)
        t = b.cur
        b.cur = t - 20
        sumsq(b, f'ssq{j}', [f'qa{j}{jd}' for jd in range(3)], f's{S_EPSQ}')
        qk_norm(b, j)
        b.cur = t
        qk_pack(b, j)
        for jd in range(3):
            mf += proj_chain(b, f'va{j}{jd}', WV, xf, jd, True)
            t = b.cur
            b.cur = t - 30
            if j < 2:
                scale_pack(b, f'va{j}{jd}', None, lambda e: f'%v0{jd}.{e}', 2 * j)
            else:
                scale_pack(b, f'va{j}{jd}', None, lambda e: f'%v1{jd}.{e}', 0)
            b.cur = t
    T1 = b.cur

    k2_last = mf[len(mf) - 36 - 1]
    wv = b('s_waitcnt vmcnt(6)', after=stores + [k2_last])
    barm = b('s_barrier', after=[wv, stat_rd] + xrd)
    b(f'v_xor_b32 v{V_XA0}, {TOG}, v{V_XA0}', after=[barm])
    b(f'v_xor_b32 v{V_XA1}, {TOG}, v{V_XA1}', after=[barm])
    b(f's_add_u32 s{S_T0}, s{S_IT}, 2', after=[barm])
    b(f's_cmp_lt_u32 s{S_T0}, s{S_N}')
    b(f's_cselect_b32 s{S_SRDX + 2}, s{S_NB}, 0')
    dma_slots = []
    for i in range(5):
        if i == 4:
            b(f's_mov_b32 m0, s{S_M0B}')
        else:
            b(f's_add_u32 m0, s{S_M0A}, {1024 * i}')
        dma_slots.append(b(f'buffer_load_dwordx4 v{V_DMA + i}, s[{S_SRDX}:{S_SRDX + 3}], s{S_OFF} offen{cfg["ld_flags"]} lds', after=[barm], prio=-400))
    b(f's_xor_b32 s{S_M0A}, s{S_M0A}, {TOG}')
    b(f's_xor_b32 s{S_M0B}, s{S_M0B}, s{S_M0T}')
    for k in range(4, 0, -1):
        b(f's_mov_b32 s{S_OFF + k}, s{S_OFF + k - 1}')
    b(f's_add_u32 s{S_J}, s{S_J}, s{S_DJ}')
    b(f's_add_u32 s{S_OFF}, s{S_OFF}, s{S_DOFF}')
    b(f's_cmp_ge_u32 s{S_J}, 72')
    b(f's_cselect_b32 s{S_T0}, 72, 0')
    b(f's_cselect_b32 s{S_T1}, s{S_DCAR}, 0')
    b(f's_sub_u32 s{S_J}, s{S_J}, s{S_T0}')
    b(f's_add_u32 s{S_OFF}, s{S_OFF}, s{S_T1}')

    e_at = mf[len(mf) - cfg['e_lead']]
    ea, eb, ec = c.new('ea', 4), c.new('eb', 4), c.new('ec', 4)
    for t, off in ((ea, 0), (eb, 16), (ec, 48)):
        b(f'ds_read_b128 {t}, v{V_QKE} offset:{off}', after=[e_at], prio=-300)
    tx = c.new('tx', 1)
    b(f'ds_read_b32 {tx}, v{V_VE} offset:192', after=[e_at], prio=-299)
    for jd in range(3):
        b(f'ds_read2_b32 %v1{jd}.2:3, v{V_VE} offset0:{16 * jd} offset1:{16 * jd}', after=[mf[len(mf) - cfg['ve_lead']]], prio=-298)
    b(f'v_add_u32 v{V_QKE}, 320, v{V_QKE}', prio=T1 + 200)
    b(f'v_add_u32 v{V_VE}, 256, v{V_VE}', prio=T1 + 200)

    b.cur = T1 - 10
    for j in range(3):
        ex = c.new(f'ex{j}', 4)
        b(f'{M32} {ex}, {ea}, %qp{j}, {vr(V_BEX + 2 * j, 4)}')
        b(f'{M32} {ex}, {eb}, %kp{j}, {ex}')
        b(f'{M32} {ex}, {ec}, %tp{j}, {ex}')
        b(f'v_mov_b32_dpp {tx}, {ex}.1 quad_perm:[0,1,2,3] row_mask:{hex(1 << j)} bank_mask:0xf')
    b.cur = T1
    if safe:
        mx, mt = c.new('mxx', 1), c.new('mtx', 1)
        b(f'v_mov_b32 {mx}, {tx}')
        for ctl in ('quad_perm:[1,0,3,2]', 'quad_perm:[2,3,0,1]', 'row_half_mirror', 'row_mirror'):
            b(f'v_max_f32_dpp {mx}, {mx}, {mx} {ctl} row_mask:0xf bank_mask:0xf')
        group_max(b, mx, mt)
        b(f'v_sub_f32 {tx}, {tx}, {mx}')
    b(f'v_exp_f32 {tx}, {tx}')
    b(f'{CVT} {tx}, {tx}, {tx}')
    pw = b(f'ds_write_b16 v{V_PW}, {tx}', prio=-200)

    out_mf = []
    o_wr = []
    s_first = {}
    pv_last = {}
    exp_marks = {}

    def s_tile(jq, after):
        for jk in range(3):
            s = c.new(f's{jq}{jk}', 4)
            m = b(f'{M32} {s}, %kp{jk}, %qp{jq}, {BIAS(jq, jk)}', after=[after[jk]] if after else [])
            s_first.setdefault(jq, m)
            b(f'{M16} {s}, %tp{jk}.2:3, %tp{jq}.0:1, {s}')

    def softmax(jq):
        p0 = c.new(f'p0{jq}', 4)
        regs = [f'%s{jq}{jk}.{r}' for jk in range(3) for r in range(4)] + [f'%ex{jq}.0']
        if safe:
            mx, mt = c.new(f'mx{jq}', 1), c.new(f'mt{jq}', 1)
            b(f'v_max3_f32 {mx}, {regs[12]}, {regs[0]}, {regs[1]}')
            for k in range(2, 12, 2):
                b(f'v_max3_f32 {mx}, {mx}, {regs[k]}, {regs[k + 1]}')
            group_max(b, mx, mt)
        marks = []
        for jk in range(3):
            for r in (0, 2):
                for q in (r, r + 1):
                    x = f'%s{jq}{jk}.{q}'
                    if safe:
                        b(f'v_sub_f32 {x}, {x}, {mx}')
                    b(f'v_exp_f32 {x}, {x}')
                d = f'{p0}.{2 * jk + r // 2}' if jk < 2 else f'v{V_P1 + r // 2}'
                last = b(f'{CVT} {d}, %s{jq}{jk}.{r}, %s{jq}{jk}.{r + 1}')
            marks.append(last)
        x = f'%ex{jq}.0'
        if safe:
            b(f'v_sub_f32 {x}, {x}, {mx}')
        b(f'v_exp_f32 {x}, {x}')
        b(f'{CVT} v{V_P1 + 2}, {x}, 0')
        exp_marks[jq] = marks

    def pv(jq):
        la = c.new(f'la{jq}', 4)
        p0, p1 = f'%p0{jq}', vr(V_P1, 4)
        b(f'{M32} {la}, {vr(V_ONES, 4)}, {p1}, 0')
        b(f'{M32} {la}, {vr(V_ONES, 4)}, {p0}, {la}')
        for jd in range(3):
            oa = c.new(f'oa{jq}{jd}', 4)
            b(f'{M32} {oa}, %v1{jd}, {p1}, 0')
            pv_last[jq] = b(f'{M32} {oa}, %v0{jd}, {p0}, {oa}')

    def o_post(jq):
        la = f'%la{jq}.0'
        b(f'v_rcp_f32 {la}, {la}')
        op0, op1 = c.new(f'op0{jq}', 4), c.new(f'op1{jq}', 2)
        for jd in range(2):
            scale_pack(b, f'oa{jq}{jd}', la, lambda e: f'{op0}.{e}', 2 * jd)
        o_wr.append(b(f'ds_write_b128 v{V_OW}, {op0} offset:{L_O + jq * 6144}', prio=-100))
        scale_pack(b, f'oa{jq}2', la, lambda e: f'{op1}.{e}', 0)
        o_wr.append(b(f'ds_write_b64 v{V_OT}, {op1} offset:{L_O + jq * 6144 + 4096}', prio=-100))

    def extra_pv(after):
        pa0, pa1 = c.new('pa0', 4), c.new('pa1', 4)
        b(f'ds_read_b128 {pa0}, v{V_PR}', after=[pw] + after, prio=-250)
        b(f'ds_read_b128 {pa1}, v{V_PR} offset:64', after=[pw] + after, prio=-250)
        lx = c.new('lx', 4)
        b(f'{M32} {lx}, {pa0}, {vr(V_ONES, 4)}, 0')
        b(f'{M32} {lx}, {pa1}, {vr(V_ONES, 4)}, {lx}')
        for jd in range(3):
            ox = c.new(f'ox{jd}', 4)
            b(f'{M32} {ox}, {pa0}, %v0{jd}, 0')
            b(f'{M32} {ox}, {pa1}, %v1{jd}, {ox}')
        b(f'v_rcp_f32 {lx}.0, {lx}.0')
        b(f'v_mul_f32 %ox0.0, %ox0.0, {lx}.0')
        for jd in (1, 2):
            b(f'v_mul_f32_dpp %ox0.0, %ox{jd}.0, {lx}.0 quad_perm:[0,1,2,3] row_mask:{hex(1 << jd)} bank_mask:0xf')
        b(f'{CVT} %ox0.0, %ox0.0, %ox0.0')
        o_wr.append(b(f'ds_write_b16 v{V_OE}, %ox0.0', prio=-100))
        b(f'v_add_u32 v{V_OE}, 16, v{V_OE}', prio=T1 + 200)

    A = cfg['att']
    b.cur = T1 + A['s0']
    s_tile(0, None)
    for jq in range(3):
        b.cur = T1 + A['sm'][jq]
        softmax(jq)
        if jq < 2:
            b.cur = T1 + A['s'][jq]
            d = A['s_after']
            s_tile(jq + 1, [exp_marks[jq][max(0, jk - d)] for jk in range(3)])
        b.cur = T1 + A['pv'][jq]
        pv(jq)
        b.cur = T1 + A['op'][jq]
        o_post(jq)
        if jq == A['x_after']:
            b.cur = T1 + A['x']
            extra_pv([exp_marks[jq][1]])

    ord_ = []
    b.cur = T1 + 100
    OL = cfg['o_lead']
    for j in range(3):
        if cfg['out_chain']:
            for p in range(6):
                t = c.new(f'of{j}{p}', 4)
                k = len(out_mf) + p - OL
                aft = out_mf[min(k, len(out_mf) - 1)] if k >= 0 and out_mf else mf[len(mf) - cfg['o_first'] + p]
                ord_.append(b(f'ds_read_b128 {t}, v{V_OR} offset:{L_O + j * 6144 + p * 1024}', after=[aft], prio=-450))
            for jc in range(3):
                out_mf += proj_chain(b, f'y{j}{jc}', WO, lambda p: f'%of{j}{p}', jc, False, step=0.01)
        else:
            for p in range(6):
                t = c.new(f'of{j}{p}', 4)
                k = len(out_mf) - OL
                aft = out_mf[k] if k >= 0 else mf[len(mf) - cfg['o_first'] + p]
                ord_.append(b(f'ds_read_b128 {t}, v{V_OR} offset:{L_O + j * 6144 + p * 1024}', after=[aft], prio=-450))
                for jc in range(3):
                    y = f'%y{j}{jc}'
                    out_mf.append(b(f'{M32} {y}, {WO(jc, p)}, {t}, {0 if p == 0 else y}'))
        t = b.cur
        b.cur = T1 + cfg['ss_prio'][j]
        sumsq(b, f'ssy{j}', [f'y{j}{jc}' for jc in range(3)], f's{S_EPSY}')
        b.cur = t
    b.cur = T1 + cfg['ss_prio'][2]
    sp = c.new('sp', 2)
    b(f'{CVT} {sp}.0, %ssy0, %ssy1')
    b(f'{CVT} {sp}.1, %ssy2, %ssy2')
    o_wr.append(b(f'ds_write_b64 v{V_OT}, {sp} offset:{L_STAT}', prio=-100))
    for i, d in enumerate(dma_slots):
        k = cfg['dma_at'][i]
        d.after.append(mf[len(mf) + k] if k < 0 else out_mf[k])
    for r in (V_OR, V_OW, V_OT):
        b(f'v_xor_b32 v{r}, {TOG}, v{r}', prio=T1 + 300)

    b.cur = T1 + 150
    H = cfg['h_lead']
    rd, ch = head_part(b, cfg, after=[out_mf[min(len(out_mf) - 1, len(out_mf) - H + s)] for s in range(6)])
    for r in rd:
        r.after.append(barm)
    b(f's_add_u32 s{S_IT}, s{S_IT}, 1')
    cmp1 = b(f's_cmp_lt_u32 s{S_IT}, s{S_N}')
    bar = b('s_barrier', after=o_wr + ord_ + [ch[-2]], prio=1e6)
    ch[-1].after.append(bar)
    rest = [i for i in b.ins if i is not ch[-1]]
    ch[-1].after += [i for i in rest if i.seq > ch[-1].seq and not (set(i.uses) & set(ch[-1].defs))]
    ch[-1].after += [i for i in rest if i.seq < ch[-1].seq]
    b(f's_cbranch_scc1 {label}', after=list(b.ins), prio=2e6)
    b.entry = [(ch[-1], 1)]
    return b


CFG = dict(lds_lat=128, lead=10, head_q=1, head_ss=True, ln_prio=[5, 30, 60], e_lead=30, ve_lead=12,
           st_flags='', ld_flags=' nt', out_chain=False, o_lead=9, o_first=14, h_lead=12,
           ss_prio=[25, 45, 62], dma_at=[-30, -22, -14, -6, 4],
           att=dict(s0=-5, sm=[1, 21, 41], s=[2, 22], pv=[3, 23, 43], op=[20, 40, 60], s_after=1, x_after=0, x=10))

if __name__ == '__main__':
    import sys
    for safe in (False, True):
        ctx = Ctx()
        b = build_loop(ctx, CFG, safe, 'L')
        out = b.schedule()
        from collections import Counter
        print('safe', safe, 'cycles', b.cycles, 'stall', b.stall, Counter(i.kind for i in out), 'open', [i.text for i in b.open_reads])
        busy = sum(8 if i.kind == 'mfma' else i.dur for i in out if i.kind in ('mfma', 'valu') + MEM)
        print(' issue busy', busy, 'pipe', 16 * sum(i.kind == 'mfma' for i in out), 'pool', len(POOL))
        try:
            mp, press, entry = allocate(ctx, out, POOL, True)
            print(' max pressure', mp, 'entry', sorted({k[1] for k in entry}))
        except RuntimeError as e:
            print(e)
            press = None
        if not safe:
            with open('sched.txt', 'w') as f:
                for p, i in enumerate(out):
                    f.write(f'{i.time:5d} {press[2*p] if press else 0:3d} {i.text}\n')
```

```python
from ir import *

M32 = 'v_mfma_f32_16x16x32_bf16'
M16 = 'v_mfma_f32_16x16x16_bf16'
CVT = 'v_cvt_pk_bf16_f32'

TOG = 0x10000
L_O = 0x0000
L_STAT = 0x4800
L_X = 0x5000
NSLOT = 24
L_VE = 0x9800
VE_H = NSLOT * 256
L_PE = L_VE + 4 * VE_H
L_DUM = L_PE + 512
L_OED = L_DUM + 1024
L_QKE = 0x19800
QKE_H = NSLOT * 320
L_OE = L_QKE + 4 * QKE_H
L_XE = L_OE + 12288
L_TAB = L_XE + 12288
L_END = L_TAB + 3072
assert L_OED + 512 <= 0x10000 and L_END <= 163840
LDS_BYTES = 163840

_next = [0]


def _v(n, al=1):
    while _next[0] % al:
        _next[0] += 1
    b = _next[0]
    _next[0] += n
    return b


V_LANE = _v(1)
V_XA0 = V_LANE
V_XA1 = _v(1)
V_OR = _v(1)
V_OW = _v(1)
V_OT = _v(1)
V_QKE = _v(1)
V_VE = _v(1)
V_OE = _v(1)
V_PW = _v(1)
V_PR = _v(1)
V_DMA = _v(5)
V_ST4 = _v(3)
V_ST2 = _v(3)
V_BEX = _v(6, 2)
V_ONES = _v(4, 2)
V_SEL = _v(4, 2)
V_P1 = _v(4, 2)
V_BIAS = _v(36, 2)
V_WO = _v(32, 2)
POOL0 = _v(0, 2)
POOL = list(range(POOL0, 256))


def vr(b, n=1):
    return f'v{b}' if n == 1 else f'v[{b}:{b + n - 1}]'


def WQ(jd, s): return f'a[{(jd * 6 + s) * 4}:{(jd * 6 + s) * 4 + 3}]'
def WK(jd, s): return f'a[{72 + (jd * 6 + s) * 4}:{72 + (jd * 6 + s) * 4 + 3}]'
def WV(jd, s): return f'a[{144 + (jd * 6 + s) * 4}:{144 + (jd * 6 + s) * 4 + 3}]'


def wo_reg(jc, p):
    f = jc * 6 + p
    return ('a', 216 + 4 * f) if f < 10 else ('v', V_WO + 4 * (f - 10))


def WO(jc, p):
    bank, b = wo_reg(jc, p)
    return f'{bank}[{b}:{b + 3}]'


def BIAS(jq, jk): return vr(V_BIAS + (jq * 3 + jk) * 4, 4)


S_SRDX = 8
S_SRDO = 12
S_H = 16
S_N = 17
S_IT = 18
S_J = 19
S_DJ = 20
S_DOFF = 21
S_DCAR = 22
S_OFF = 23
S_M0A = 28
S_M0B = 29
S_M0T = 30
S_C = 31
S_EPSQ = 32
S_EPSY = 33
S_T0 = 34
S_T1 = 35
S_NB = 36
S_OFF0 = 37
S_J0 = 38
S_BEE = 39
S_TOK48 = 7
NBYTES = 100270464


def xread(b, name, j, s, base, addr=None, **kw):
    t = b.ctx.new(name, 4)
    a0, a1 = addr or (f'v{V_XA0}', f'v{V_XA1}')
    return b(f'ds_read_b128 {t}, {a1 if s & 1 else a0} offset:{base + j * 6144 + (s >> 1) * 128}', **kw)


def proj_chain(b, acc, w, xf, jd, x_is_a, step=1.0):
    t = b.ctx.new(acc, 4)
    out = []
    for s in range(6):
        a_, b_ = (xf(s), w(jd, s)) if x_is_a else (w(jd, s), xf(s))
        out.append(b(f'{M32} {t}, {a_}, {b_}, {0 if s == 0 else t}'))
        b.cur += step
    return out


def sumsq(b, ss, accs, init):
    t = b.ctx.new(ss, 1)
    first = True
    for a in accs:
        for r in range(4):
            if first:
                if init is None:
                    b(f'v_mul_f32 {t}, %{a}.{r}, %{a}.{r}')
                else:
                    b(f'v_fma_f32 {t}, %{a}.{r}, %{a}.{r}, {init}')
                first = False
            else:
                b(f'v_fmac_f32 {t}, %{a}.{r}, %{a}.{r}')


def scale_pack(b, acc, scale, dst, off):
    last = None
    for r in (0, 2):
        if scale is not None:
            b(f'v_mul_f32 %{acc}.{r}, {scale}, %{acc}.{r}')
            b(f'v_mul_f32 %{acc}.{r + 1}, {scale}, %{acc}.{r + 1}')
        d = dst(off + r // 2)
        last = b(f'{CVT} {d}, %{acc}.{r}, %{acc}.{r + 1}')
    return last


def qk_norm(b, j, sfx=''):
    c = b.ctx
    nr = c.new(f'nr{j}{sfx}', 4)
    b(f'{CVT} v{V_P1 + 2}, %ssq{j}{sfx}, %ssk{j}{sfx}')
    m = b(f'{M16} {nr}, {vr(V_SEL, 2)}, {vr(V_P1 + 2, 2)}, 0', prio=-1000)
    b(f'v_rsq_f32 {nr}.1, {nr}.1')
    b(f'v_rsq_f32 {nr}.0, {nr}.0')
    b(f'v_mul_f32 {nr}.0, s{S_C}, {nr}.0')
    return m


def qk_pack(b, j, sfx=''):
    c = b.ctx
    c.new(f'qp{j}{sfx}', 4)
    c.new(f'kp{j}{sfx}', 4)
    c.new(f'tp{j}{sfx}', 4)
    nr = f'%nr{j}{sfx}'
    for jd in range(2):
        scale_pack(b, f'ka{j}{jd}{sfx}', nr + '.1', lambda e: f'%kp{j}{sfx}.{e}', 2 * jd)
    scale_pack(b, f'ka{j}2{sfx}', nr + '.1', lambda e: f'%tp{j}{sfx}.{e}', 2)
    for jd in range(2):
        scale_pack(b, f'qa{j}{jd}{sfx}', nr + '.0', lambda e: f'%qp{j}{sfx}.{e}', 2 * jd)
    scale_pack(b, f'qa{j}2{sfx}', nr + '.0', lambda e: f'%tp{j}{sfx}.{e}', 0)


def group_max(b, m, tmp):
    for op in ('v_permlane32_swap_b32', 'v_permlane16_swap_b32'):
        b(f'v_mov_b32 {tmp}, {m}')
        b(f'{op} {m}, {tmp}')
        b(f'v_max_f32 {m}, {m}, {tmp}')


def ln_scale(b, red, r, name):
    t = b.ctx.new(name, 1)
    b(f'v_mul_f32 {t}, 0x3baaaaab, {red}.{r}')
    b(f'v_rsq_f32 {t}, {t}')
    return t


def ln_finish(b, y, rs, va4, va2, soff, name, flags=''):
    c = b.ctx
    p0 = c.new(name + 'a', 4)
    p1 = c.new(name + 'b', 2)
    for jc in range(2):
        scale_pack(b, y(jc), rs, lambda e: f'{p0}.{e}', 2 * jc)
    s0 = b(f'buffer_store_dwordx4 {p0}, {va4}, s[{S_SRDO}:{S_SRDO + 3}], {soff} offen{flags}')
    scale_pack(b, y(2), rs, lambda e: f'{p1}.{e}', 0)
    s1 = b(f'buffer_store_dwordx2 {p1}, {va2}, s[{S_SRDO}:{S_SRDO + 3}], {soff} offen{flags}')
    return s0, s1
```

```python
import struct
import sys
from loop import *

NAME = 'standalone__window_attn_swin_v2__vision'
LOG2E = 1.4426950408889634
NEG = -1e30
TAU_MAX_FAST = 32.0
ROW = 196224


def f32(x):
    return hex(struct.unpack('<I', struct.pack('<f', x))[0])


class VM:
    def __init__(self, b):
        self.b = b
        self.n = 0

    def __call__(self, text):
        self.b(text)
        self.n += 1
        return self.n

    def wait(self, idx):
        self.b(f's_waitcnt vmcnt({min(63, self.n - idx)})')


def uniq(ctx, stem, n=1):
    uniq.k += 1
    return ctx.new(f'{stem}_{uniq.k}', n)


uniq.k = 0


def rowcol(b, t):
    r, cc = uniq(b.ctx, 'r'), uniq(b.ctx, 'cc')
    b(f'v_mul_u32_u24 {r}, 37, {t}')
    b(f'v_lshrrev_b32 {r}, 8, {r}')
    b(f'v_mul_u32_u24 {cc}, 7, {r}')
    b(f'v_sub_u32 {cc}, {t}, {cc}')
    return r, cc


def tokoff(b, t, dst):
    r, cc = rowcol(b, t)
    a = uniq(b.ctx, 'a')
    b(f'v_cmp_gt_u32 vcc, 4, {r}')
    b(f'v_cndmask_b32 {a}, %hiR, %loR, vcc')
    b(f'v_add_u32 {r}, {r}, {a}')
    b(f'v_cmp_gt_u32 vcc, 4, {cc}')
    b(f'v_cndmask_b32 {a}, %hiC, %loC, vcc')
    b(f'v_add_u32 {cc}, {cc}, {a}')
    b(f'v_mul_u32_u24 {r}, 511, {r}')
    b(f'v_add_u32 {r}, {r}, {cc}')
    b(f'v_mul_u32_u24 {dst}, 384, {r}')


def slot_off(b, slot, dst):
    a, q = uniq(b.ctx, 'a'), uniq(b.ctx, 'q')
    b(f'v_mul_u32_u24 {a}, s{S_DJ}, {slot}')
    b(f'v_add_u32 {a}, s{S_J0}, {a}')
    b(f'v_mul_u32_u24 {q}, 911, {a}')
    b(f'v_lshrrev_b32 {q}, 16, {q}')
    b(f'v_mul_lo_u32 {q}, {q}, s{S_DCAR}')
    b(f'v_mul_lo_u32 {a}, {slot}, s{S_DOFF}')
    b(f'v_add3_u32 {dst}, {a}, {q}, s{S_OFF0}')
    b(f'v_add_u32 {dst}, s{S_TOK48}, {dst}')
    b(f'v_mov_b32 {a}, 0x40000000')
    b(f'v_cmp_gt_u32 vcc, s{S_N}, {slot}')
    b(f'v_cndmask_b32 {dst}, {a}, {dst}, vcc')


for a in range(0, 72 + 31 * 32):
    assert (a * 911) >> 16 == a // 72


def chunk_src(b, q, tok, byte):
    p, sw = uniq(b.ctx, 'p'), uniq(b.ctx, 'sw')
    b(f'v_mul_u32_u24 {tok}, 2731, {q}')
    b(f'v_lshrrev_b32 {tok}, 16, {tok}')
    b(f'v_mul_u32_u24 {p}, 24, {tok}')
    b(f'v_sub_u32 {p}, {q}, {p}')
    b(f'v_bfe_u32 {sw}, {tok}, 1, 3')
    b(f'v_xor_b32 {p}, {p}, {sw}')
    b(f'v_lshlrev_b32 {byte}, 4, {p}')


for q in range(1280):
    assert (q * 2731) >> 16 == q // 24


def bf_round(b, t):
    b(f'{CVT} {t}, {t}, {t}')
    b(f'v_and_b32 {t}, 0xffff0000, {t}')


L_WO = 0
WO_PITCH = 400
L_WST = 76800
WST_WAVE = 15360
RING = 5
assert L_WST + 4 * WST_WAVE <= L_XE


def build_prologue(ctx, cfg):
    b = Block(ctx, 'pro')
    c = ctx
    vm = VM(b)
    SW, SO, SR, S1, S2 = 56, 60, 64, 68, 72
    b('s_cmp_ge_u32 s2, 256')
    b('s_cbranch_scc1 L_done')
    b('s_load_dwordx4 s[40:43], s[0:1], 0')
    b('s_load_dwordx4 s[44:47], s[0:1], 16')
    b('s_load_dwordx4 s[48:51], s[0:1], 32')
    b('s_load_dwordx2 s[52:53], s[0:1], 48')
    b('s_load_dwordx2 s[54:55], s[0:1], 72')
    l, g, cc, t0, t1 = c.new('l'), c.new('g'), c.new('c'), c.new('t0'), c.new('t1')
    b(f'v_lshrrev_b32 {t0}, 6, v0')
    b(f'v_and_b32 {l}, 63, v0')
    b(f'v_readfirstlane_b32 s{S_H}, {t0}')
    b(f'v_lshrrev_b32 {g}, 4, {l}')
    b(f'v_and_b32 {cc}, 15, {l}')
    b(f's_mul_i32 s3, s2, 911')
    b(f's_lshr_b32 s3, s3, 16')
    b(f's_mul_i32 s4, s3, 72')
    b(f's_sub_u32 s{S_J0}, s2, s4')
    b(f's_mul_i32 s3, s3, {7 * ROW}')
    b(f's_mul_i32 s4, s{S_J0}, {7 * 384}')
    b(f's_add_u32 s3, s3, s4')
    b(f's_add_u32 s{S_OFF0}, s3, {3 * ROW + 3 * 384}')
    b(f's_mov_b32 s{S_DJ}, 31')
    b(f's_mov_b32 s{S_DOFF}, {3 * 7 * ROW + 31 * 7 * 384}')
    b(f's_mov_b32 s{S_DCAR}, {7 * ROW - 72 * 7 * 384}')
    b(f's_cmp_lt_u32 s2, 244')
    b(f's_cselect_b32 s{S_N}, 21, 20')
    b('s_mov_b32 s5, 0')
    b('s_mov_b32 s6, 0')
    b('s_cmp_lt_u32 s2, 247')
    b('s_cbranch_scc1 L_mode')
    b(f's_mov_b32 s{S_DJ}, 0')
    b(f's_mov_b32 s{S_J0}, 0')
    b(f's_mov_b32 s{S_N}, 18')
    b('s_sub_u32 s3, s2, 247')
    b('s_and_b32 s3, s3, 3')
    b('s_mul_i32 s3, s3, 7')
    b('s_add_u32 s3, s3, 3')
    b(f's_mov_b32 s4, {ROW}')
    b('s_cmp_lt_u32 s2, 251')
    b('s_cselect_b32 s4, s4, 384')
    b('s_cselect_b32 s6, 1, 0')
    b('s_cselect_b32 s5, 0, 1')
    b(f's_mul_i32 s{S_OFF0}, s3, s4')
    b(f's_mul_i32 s{S_DOFF}, s4, 28')
    b('s_cmp_lt_u32 s2, 255')
    b('s_cbranch_scc1 L_mode')
    b(f's_mov_b32 s{S_N}, 1')
    b(f's_mov_b32 s{S_OFF0}, 0')
    b('s_mov_b32 s6, 1')
    b('L_mode:')
    b('s_waitcnt lgkmcnt(0)')
    b('s_load_dwordx2 s[76:77], s[46:47], 0')
    b(f's_mov_b32 s{S_NB}, {NBYTES}')
    for srd, ptr, size in ((S_SRDX, 40, NBYTES), (S_SRDO, 54, 0), (SW, 42, 221184), (SO, 44, 73728), (SR, 52, 676), (S1, 48, 64), (S2, 50, 128)):
        b(f's_mov_b32 s{srd}, s{ptr}')
        b(f's_mov_b32 s{srd + 1}, s{ptr + 1}')
        b(f's_mov_b32 s{srd + 2}, {size}')
        b(f's_mov_b32 s{srd + 3}, 0x00020000')

    wa = c.new('wa')
    b(f's_mul_i32 s3, s{S_H}, 48')
    b(f'v_add_u32 {t0}, s3, {cc}')
    b(f'v_mul_u32_u24 {wa}, 384, {t0}')
    b(f'v_lshl_add_u32 {wa}, {g}, 4, {wa}')
    wwr = c.new('wwr')
    b(f'v_mul_u32_u24 {wwr}, {WO_PITCH}, {t0}')
    b(f'v_lshl_add_u32 {wwr}, {g}, 4, {wwr}')
    wo_ld = []
    for t in range(3):
        b(f's_mov_b32 s4, {t * 6144}')
        for s in range(6):
            k = vm(f'buffer_load_dwordx4 {c.new(f"wn{t}{s}", 4)}, {wa}, s[{SO}:{SO + 3}], s4 offen offset:{64 * s}')
        wo_ld.append(k)
    big = c.new('big')
    b(f'v_mov_b32 {big}, 0x40000000')
    b(f'v_cmp_gt_u32 vcc, 16, {l}')
    b(f'v_lshlrev_b32 {t0}, 1, {cc}')
    b(f'v_cndmask_b32 {t0}, {big}, {t0}, vcc')
    w1, w1h = c.new('w1', 2), c.new('w1h')
    vm(f'buffer_load_ushort {w1}.0, {t0}, s[{S1}:{S1 + 3}], 0 offen')
    vm(f'buffer_load_ushort {w1h}, {t0}, s[{S1}:{S1 + 3}], 0 offen offset:32')
    b(f'v_add_u32 {t1}, s3, {cc}')
    b(f'v_lshlrev_b32 {t1}, 2, {t1}')
    b(f'v_cndmask_b32 {t1}, {big}, {t1}, vcc')
    for t in range(3):
        vm(f'buffer_load_dword {c.new(f"rc{t}", 2)}.0, {t1}, s[{SR}:{SR + 3}], 0 offen offset:{64 * t}')
    w2a = c.new('w2a')
    b(f'v_lshrrev_b32 {w2a}, 2, {cc}')
    b(f'v_lshlrev_b32 {w2a}, 1, {w2a}')
    b(f'v_lshl_add_u32 {w2a}, {g}, 5, {w2a}')
    for i in range(4):
        small = vm(f'buffer_load_ushort {c.new(f"w2r{i}")}, {w2a}, s[{S2}:{S2 + 3}], 0 offen offset:{8 * i}')
    ws = [c.new(f'ws{i}') for i in range(3)]
    for i in range(3):
        rho, pc, k = uniq(c, 'rho'), uniq(c, 'pc'), uniq(c, 'k')
        b(f'v_add_u32 {t0}, {64 * i}, {l}')
        b(f'v_mul_u32_u24 {rho}, 171, {t0}')
        b(f'v_lshrrev_b32 {rho}, 10, {rho}')
        b(f'v_mul_u32_u24 {pc}, 6, {rho}')
        b(f'v_sub_u32 {pc}, {t0}, {pc}')
        b(f'v_and_b32 {k}, 19, {rho}')
        b(f'v_bfe_u32 {t0}, {rho}, 2, 1')
        b(f'v_lshl_or_b32 {k}, {t0}, 3, {k}')
        b(f'v_bfe_u32 {t0}, {rho}, 3, 1')
        b(f'v_lshl_or_b32 {k}, {t0}, 2, {k}')
        b(f'v_mul_u32_u24 {k}, 1152, {k}')
        b(f'v_lshl_add_u32 {ws[i]}, {pc}, 4, {k}')
        if i:
            b(f'v_subrev_u32 {ws[i]}, {1024 * i}, {ws[i]}')
    b(f's_mul_i32 s78, s{S_H}, {WST_WAVE}')
    b(f's_add_u32 s78, s78, {L_WST}')
    b(f's_mul_i32 s79, s{S_H}, 96')
    chunks = [(m, s) for m in (1, 0, 2) for s in range(6)]
    ch_done = {}

    def issue_chunk(n):
        m, s = chunks[n]
        b(f's_add_u32 m0, s78, {(n % RING) * 3072}')
        b(f's_add_u32 s4, s79, {m * 384 + s * 32 * 1152}')
        for i in range(3):
            off = f' offset:{1024 * i}' if i else ''
            ch_done[n] = vm(f'buffer_load_dwordx4 {ws[i]}, s[{SW}:{SW + 3}], s4 offen{off} lds')

    for n in range(RING):
        issue_chunk(n)
    wtr = c.new('wtr')
    b(f'v_lshrrev_b32 {t0}, 1, {g}')
    b(f'v_and_b32 {t1}, 1, {g}')
    b(f'v_lshlrev_b32 {t0}, 4, {t0}')
    b(f'v_lshl_add_u32 {t0}, {t1}, 2, {t0}')
    b(f'v_lshrrev_b32 {t1}, 2, {cc}')
    b(f'v_add_u32 {t0}, {t0}, {t1}')
    b(f'v_mul_u32_u24 {wtr}, 96, {t0}')
    b(f'v_and_b32 {t1}, 3, {cc}')
    b(f'v_lshl_add_u32 {wtr}, {t1}, 3, {wtr}')
    b(f'v_add_u32 {wtr}, s78, {wtr}')
    step_n = [0]

    def step():
        n = step_n[0]
        if n >= len(chunks):
            return
        step_n[0] += 1
        m, s = chunks[n]
        vm.wait(ch_done[n])
        for jd in range(3):
            base = 72 * m + (jd * 6 + s) * 4
            for u in range(2):
                b(f'ds_read_b64_tr_b16 a[{base + 2 * u}:{base + 2 * u + 1}], {wtr} offset:{(n % RING) * 3072 + u * 768 + 32 * jd}')
        if n + RING < len(chunks):
            b('s_waitcnt lgkmcnt(0)')
            issue_chunk(n + RING)

    for nm, sr in (('R', 5), ('C', 6)):
        lo, hi = c.new('lo' + nm), c.new('hi' + nm)
        b(f's_mul_i32 s3, s{sr}, 507')
        b(f's_mul_i32 s4, s{sr}, -4')
        b(f'v_mov_b32 {lo}, s3')
        b(f'v_mov_b32 {hi}, s4')
    b(f's_mul_i32 s3, s5, {-4 * ROW}')
    b(f's_mul_i32 s4, s6, {-4 * 384}')
    b(f's_add_u32 s3, s3, s4')
    b(f's_add_u32 s{S_TOK48}, s3, {6 * ROW + 6 * 384}')
    b(f's_mul_i32 s3, s{S_H}, 192')
    b(f's_mul_i32 s4, s{S_H}, 3072')
    for i in range(3):
        q, tok, byte, off = uniq(c, 'q'), uniq(c, 'tok'), uniq(c, 'byte'), uniq(c, 'off')
        b(f'v_add_u32 {q}, s3, {l}')
        if i:
            b(f'v_add_u32 {q}, {64 * i}, {q}')
        chunk_src(b, q, tok, byte)
        slot_off(b, tok, off)
        b(f'v_add_u32 {off}, {off}, {byte}')
        b(f's_add_u32 m0, s4, {L_XE + 1024 * i}')
        xe_ld = vm(f'buffer_load_dwordx4 {off}, s[{S_SRDX}:{S_SRDX + 3}], 0 offen{cfg["ld_flags"]} lds')

    for r in range(4):
        b(f'v_mov_b32 v{V_ONES + r}, 0x3f803f80')
    b(f'v_and_b32 {t0}, 1, {cc}')
    b(f'v_lshlrev_b32 {t0}, 4, {t0}')
    b(f'v_mov_b32 {t1}, 0x3f80')
    b(f'v_lshlrev_b32 {t1}, {t0}, {t1}')
    b(f'v_and_b32 {t0}, 2, {cc}')
    b(f'v_cmp_eq_u32 vcc, 0, {t0}')
    b(f'v_cndmask_b32 v{V_SEL}, 0, {t1}, vcc')
    b(f'v_cndmask_b32 v{V_SEL + 1}, {t1}, 0, vcc')
    b(f'v_mov_b32 v{V_SEL + 2}, v{V_SEL}')
    b(f'v_mov_b32 v{V_SEL + 3}, v{V_SEL + 1}')
    b(f'v_mov_b32 v{V_P1 + 3}, 0')
    b(f's_mov_b32 s{S_EPSQ}, {f32(0.25e-12)}')
    b(f's_mov_b32 s{S_EPSY}, {f32(192e-5 / 16)}')
    b('s_waitcnt lgkmcnt(0)')
    b(f's_cmp_lt_u32 s{S_H}, 2')
    b('s_cselect_b32 s3, s76, s77')
    b(f's_and_b32 s4, s{S_H}, 1')
    b('s_lshl_b32 s4, s4, 4')
    b('s_lshr_b32 s3, s3, s4')
    b('s_lshl_b32 s3, s3, 16')
    tau = c.new('tau')
    b(f'v_mov_b32 {tau}, s3')
    b(f'v_max_f32 {tau}, {f32(-100.0)}, {tau}')
    b(f'v_min_f32 {tau}, {f32(4.59375)}, {tau}')
    b(f'v_mul_f32 {tau}, {f32(LOG2E)}, {tau}')
    b(f'v_exp_f32 {tau}, {tau}')
    bf_round(b, tau)
    b(f'v_readfirstlane_b32 s80, {tau}')
    b(f'v_mul_f32 {tau}, {f32(LOG2E)}, {tau}')
    b(f'v_readfirstlane_b32 s{S_C}, {tau}')

    vm.wait(small)
    b(f'v_lshl_or_b32 {w1}.0, {w1h}, 16, {w1}.0')
    b(f'v_mov_b32 {w1}.1, 0')
    w2 = c.new('w2', 2)
    b(f'v_lshl_or_b32 {w2}.0, %w2r1, 16, %w2r0')
    b(f'v_lshl_or_b32 {w2}.1, %w2r3, 16, %w2r2')
    tw = c.new('tw')
    b(f's_mul_i32 s3, s{S_H}, 192')
    b(f's_add_u32 s3, s3, {L_TAB}')
    b(f'v_mul_u32_u24 {tw}, 768, {g}')
    b(f'v_lshl_add_u32 {tw}, {cc}, 2, {tw}')
    b(f'v_add_u32 {tw}, s3, {tw}')
    for t in range(3):
        b(f'v_mov_b32 %rc{t}.1, 0')
    for t in range(3):
        b(f'{M16} {c.new(f"hd{t}", 4)}, {w1}, %rc{t}, 0')
    step()
    for t in range(3):
        for r in range(4):
            b(f'v_max_f32 %hd{t}.{r}, 0, %hd{t}.{r}')
        hp = c.new(f'hp{t}', 2)
        b(f'{CVT} {hp}.0, %hd{t}.0, %hd{t}.1')
        b(f'{CVT} {hp}.1, %hd{t}.2, %hd{t}.3')
    for t in range(3):
        b(f'{M16} {c.new(f"z{t}", 4)}, {w2}, %hp{t}, 0')
    step()
    for t in range(3):
        z = f'%z{t}.0'
        bf_round(b, z)
        b(f'v_mul_f32 {z}, {f32(-LOG2E)}, {z}')
        b(f'v_exp_f32 {z}, {z}')
        b(f'v_add_f32 {z}, 1.0, {z}')
        b(f'v_rcp_f32 {z}, {z}')
        bf_round(b, z)
        b(f'v_add_f32 {z}, -0.5, {z}')
        b(f'v_mul_f32 {z}, {f32(16 * LOG2E)}, {z}')
        b(f'ds_write_b32 {tw}, {z} offset:{64 * t}')
    step()

    for t in range(3):
        sm = c.new(f'wsum{t}', 4)
        for s in range(6):
            b(f'{M32} {sm}, {vr(V_ONES, 4)}, %wn{t}{s}, {0 if s == 0 else sm}')
    step()
    for t in range(3):
        m = f'%wsum{t}.0'
        b(f'v_mul_f32 {m}, 0x3baaaaab, {m}')
        for s in range(6):
            for r in range(4):
                w = f'%wn{t}{s}.{r}'
                b(f'v_lshlrev_b32 {t0}, 16, {w}')
                b(f'v_and_b32 {t1}, 0xffff0000, {w}')
                b(f'v_sub_f32 {t0}, {t0}, {m}')
                b(f'v_sub_f32 {t1}, {t1}, {m}')
                b(f'{CVT} {w}, {t0}, {t1}')
            b(f'ds_write_b128 {wwr}, %wn{t}{s} offset:{L_WO + t * 16 * WO_PITCH + 64 * s}')
            if s % 3 == 2:
                step()
    b('s_waitcnt lgkmcnt(0)')
    b('s_barrier')
    otr, otr2 = c.new('otr'), c.new('otr2')
    b(f'v_lshrrev_b32 {t0}, 2, {l}')
    b(f'v_mul_u32_u24 {t0}, {WO_PITCH}, {t0}')
    b(f'v_and_b32 {t1}, 3, {cc}')
    b(f's_lshl_b32 s3, s{S_H}, 6')
    b(f'v_lshl_add_u32 {otr}, {t1}, 4, {t0}')
    b(f'v_add_u32 {otr}, s3, {otr}')
    b(f's_lshl_b32 s3, s{S_H}, 5')
    b(f's_add_u32 s3, s3, 256')
    b(f'v_lshl_add_u32 {otr2}, {t1}, 3, {t0}')
    b(f'v_add_u32 {otr2}, s3, {otr2}')
    hi_a, hi_b = c.new('otrh'), c.new('otr2h')
    b(f'v_add_u32 {hi_a}, {6 * 16 * WO_PITCH}, {otr}')
    b(f'v_add_u32 {hi_b}, {6 * 16 * WO_PITCH}, {otr2}')
    rowtile = {p: (3 * p, 3 * p + 1) for p in range(4)}
    rowtile[4], rowtile[5] = (2, 5), (8, 11)
    for jc in range(3):
        for p in range(6):
            bank, r = wo_reg(jc, p)
            for u in range(2):
                t = rowtile[p][u]
                a = (otr2 if jc == 2 else otr) if t < 6 else (hi_b if jc == 2 else hi_a)
                b(f'ds_read_b64_tr_b16 {bank}[{r + 2 * u}:{r + 2 * u + 1}], {a} offset:{L_WO + (t % 6) * 16 * WO_PITCH + (8 if jc == 1 else 0)}')
        if jc < 2:
            step()
    b(f's_lshl_b32 s3, s{S_H}, 8')
    for i in range(5):
        q, tok, byte = uniq(c, 'q'), uniq(c, 'tok'), uniq(c, 'byte')
        if i == 4:
            b(f's_lshl_b32 s3, s{S_H}, 6')
        b(f'v_add_u32 {q}, s3, {l}')
        if i:
            b(f'v_add_u32 {q}, {64 * i if i < 4 else 1024}, {q}')
        chunk_src(b, q, tok, byte)
        tokoff(b, tok, f'v{V_DMA + i}')
        b(f'v_add_u32 v{V_DMA + i}, v{V_DMA + i}, {byte}')
        if i == 4:
            b(f'v_cmp_gt_u32 vcc, 48, {tok}')
            b(f'v_cndmask_b32 v{V_DMA + i}, {big}, v{V_DMA + i}, vcc')
    b(f's_lshl_b32 s{S_M0A}, s{S_H}, 12')
    b(f's_add_u32 s{S_M0A}, s{S_M0A}, {L_X}')
    b(f's_lshl_b32 s3, s{S_H}, 10')
    b(f's_add_u32 s3, s3, {L_X + 16384}')
    b(f's_cmp_lt_u32 s{S_H}, 2')
    b(f's_cselect_b32 s{S_M0B}, s3, {L_DUM}')
    b(f's_cselect_b32 s{S_M0T}, {TOG}, 0')

    def walk():
        b(f's_add_u32 s{S_J}, s{S_J}, s{S_DJ}')
        b(f's_add_u32 s{S_OFF}, s{S_OFF}, s{S_DOFF}')
        b(f's_cmp_ge_u32 s{S_J}, 72')
        b(f's_cselect_b32 s{S_T0}, 72, 0')
        b(f's_cselect_b32 s{S_T1}, s{S_DCAR}, 0')
        b(f's_sub_u32 s{S_J}, s{S_J}, s{S_T0}')
        b(f's_add_u32 s{S_OFF}, s{S_OFF}, s{S_T1}')

    def xdma(tog):
        for i in range(5):
            if i < 4:
                b(f's_add_u32 m0, s{S_M0A}, {1024 * i + (TOG if tog else 0)}')
            elif tog:
                b(f's_xor_b32 m0, s{S_M0B}, s{S_M0T}')
            else:
                b(f's_mov_b32 m0, s{S_M0B}')
            k = vm(f'buffer_load_dwordx4 v{V_DMA + i}, s[{S_SRDX}:{S_SRDX + 3}], s{S_OFF} offen{cfg["ld_flags"]} lds')
        return k

    b(f's_mov_b32 s{S_J}, s{S_J0}')
    b(f's_mov_b32 s{S_OFF}, s{S_OFF0}')
    b(f's_mov_b32 s{S_OFF + 2}, s{S_OFF0}')
    b(f's_mov_b32 s{S_OFF + 3}, 0')
    b(f's_mov_b32 s{S_OFF + 4}, 0')
    b(f's_mov_b32 s{S_IT}, 0')
    b('s_waitcnt lgkmcnt(0)')
    b('s_barrier')
    x0_ld = xdma(False)
    walk()
    b(f's_mov_b32 s{S_OFF + 1}, s{S_OFF}')
    step()
    for j in range(3):
        tok = uniq(c, 'tok')
        b(f'v_add_u32 {tok}, {16 * j}, {cc}')
        tokoff(b, tok, t0)
        b(f's_lshl_b32 s3, s{S_H}, 6')
        b(f'v_lshl_add_u32 {t1}, {g}, 4, {t0}')
        b(f'v_add_u32 v{V_ST4 + j}, s3, {t1}')
        b(f's_lshl_b32 s3, s{S_H}, 5')
        b(f's_add_u32 s3, s3, 256')
        b(f'v_lshl_add_u32 {t1}, {g}, 3, {t0}')
        b(f'v_add_u32 v{V_ST2 + j}, s3, {t1}')
    step()

    def pos(tok):
        r, x = rowcol(b, tok)
        a, reg = uniq(c, 'A'), uniq(c, 'R')
        b(f'v_mul_u32_u24 {a}, 52, {r}')
        b(f'v_lshl_add_u32 {a}, {x}, 2, {a}')
        b(f'v_lshrrev_b32 {r}, 2, {r}')
        b(f'v_lshrrev_b32 {x}, 2, {x}')
        b(f'v_and_b32 {r}, s5, {r}')
        b(f'v_and_b32 {x}, s6, {x}')
        b(f'v_lshl_or_b32 {reg}, {r}, 1, {x}')
        return a, reg

    b(f's_mul_i32 s3, s{S_H}, 768')
    b(f's_add_u32 s3, s3, {L_TAB}')
    col = []
    for j in range(3):
        tok = uniq(c, 'tok')
        b(f'v_add_u32 {tok}, {16 * j}, {cc}')
        col.append(pos(tok))
    fix = []
    for j in range(3):
        aq = uniq(c, 'aq')
        b(f'v_add_u32 {t0}, s3, {col[j][0]}')
        b(f'ds_read_b32 v{V_BEX + 2 * j}, {t0}')
        b(f'v_sub_u32 {t1}, s3, {col[j][0]}')
        b(f'ds_read_b32 v{V_BEX + 2 * j + 1}, {t1} offset:672')
        b(f'v_add_u32 {aq}, 336, {t0}')
        col[j] = col[j] + (aq,)
        fix.append((V_BEX + 2 * j, col[j][1], None))
        fix.append((V_BEX + 2 * j + 1, col[j][1], None))
    bee = c.new('bee')
    b(f'v_mov_b32 {t0}, s3')
    b(f'ds_read_b32 {bee}, {t0} offset:336')
    step()
    for jk in range(3):
        for r in range(4):
            tok = uniq(c, 'tok')
            b(f'v_lshl_add_u32 {tok}, {g}, 2, {16 * jk + r}')
            ak, rk = pos(tok)
            for jq in range(3):
                ad = uniq(c, 'ad')
                reg = V_BIAS + (jq * 3 + jk) * 4 + r
                b(f'v_sub_u32 {ad}, {col[jq][2]}, {ak}')
                b(f'ds_read_b32 v{reg}, {ad}')
                fix.append((reg, col[jq][1], rk))
        step()
    while step_n[0] < len(chunks):
        step()
    b('s_waitcnt lgkmcnt(0)')
    b(f'v_readfirstlane_b32 s{S_BEE}, {bee}')
    b('s_lshl_b32 s3, s5, 1')
    b('s_or_b32 s3, s3, s6')
    b('s_cbranch_scc0 L_nomask')
    b(f'v_mov_b32 {t1}, {f32(-100.0 * LOG2E)}')
    for reg, ra, rb in fix:
        b(f'v_cmp_ne_u32 vcc, {rb or "s3"}, {ra}')
        b(f'v_cndmask_b32 {t0}, 0, {t1}, vcc')
        b(f'v_add_f32 v{reg}, v{reg}, {t0}')
    b('L_nomask:')
    b(f'v_mov_b32 {t1}, {f32(NEG)}')
    b(f'v_cmp_gt_u32 vcc, 16, {l}')
    for j in range(3):
        b(f'v_cndmask_b32 v{V_BEX + 2 * j}, {t1}, v{V_BEX + 2 * j}, vcc')

    b(f'v_lshrrev_b32 {t0}, 1, {cc}')
    b(f'v_xor_b32 {t0}, {t0}, {g}')
    b(f'v_mul_u32_u24 {t1}, 384, {cc}')
    b(f'v_lshl_add_u32 v{V_XA0}, {t0}, 4, {t1}')
    b(f'v_xor_b32 v{V_XA1}, 64, v{V_XA0}')
    b(f'v_lshlrev_b32 {t0}, 4, {l}')
    b(f'v_xor_b32 v{V_OR}, {TOG}, {t0}')
    b(f's_lshl_b32 s3, s{S_H}, 10')
    b(f'v_add_u32 v{V_OW}, s3, {t0}')
    b(f's_lshr_b32 s3, s{S_H}, 1')
    b(f's_and_b32 s4, s{S_H}, 1')
    b('s_lshl_b32 s4, s4, 3')
    b('s_lshl_b32 s81, s3, 10')
    b('s_add_u32 s81, s81, s4')
    b(f'v_add_u32 v{V_OT}, s81, {t0}')
    b('s_lshl_b32 s81, s3, 11')
    b('s_add_u32 s81, s81, s4')
    b(f's_add_u32 s81, s81, {L_OE + 4 * 2048}')
    b(f's_lshl_b32 s3, s{S_H}, 11')
    b(f's_add_u32 s3, s3, {L_OE}')
    b(f'v_lshl_add_u32 {t0}, {g}, 3, s3')
    b(f'v_mov_b32 {t1}, s81')
    b(f'v_cmp_gt_u32 vcc, 2, {g}')
    b(f'v_cndmask_b32 {t0}, {t1}, {t0}, vcc')
    b(f'v_lshrrev_b32 {t1}, 2, {cc}')
    b(f'v_lshl_add_u32 {t0}, {t1}, 9, {t0}')
    b(f'v_and_b32 {t1}, 3, {cc}')
    b(f'v_lshl_add_u32 {t0}, {t1}, 1, {t0}')
    b(f'v_mov_b32 {t1}, {L_OED}')
    b(f'v_cmp_gt_u32 vcc, 3, {g}')
    b(f'v_cndmask_b32 v{V_OE}, {t1}, {t0}, vcc')
    b(f's_mul_i32 s3, s{S_H}, {QKE_H}')
    b(f's_add_u32 s3, s3, {L_QKE}')
    b(f'v_mul_u32_u24 {t0}, 80, {g}')
    b(f'v_and_b32 {t1}, 1, {cc}')
    b(f'v_lshl_add_u32 {t0}, {t1}, 4, {t0}')
    b(f'v_add_u32 v{V_QKE}, s3, {t0}')
    b(f's_mul_i32 s3, s{S_H}, {VE_H}')
    b(f's_add_u32 s3, s3, {L_VE}')
    b(f'v_lshl_add_u32 v{V_VE}, {cc}, 2, s3')
    b(f's_lshl_b32 s3, s{S_H}, 7')
    b(f's_add_u32 s3, s3, {L_PE}')
    b(f'v_lshl_add_u32 v{V_PR}, {g}, 4, s3')
    b(f'v_lshrrev_b32 {t0}, 1, {g}')
    b(f'v_lshl_add_u32 {t0}, {t0}, 6, s3')
    b(f'v_and_b32 {t1}, 1, {g}')
    b(f'v_lshl_add_u32 {t0}, {t1}, 3, {t0}')
    b(f'v_lshrrev_b32 {t1}, 2, {cc}')
    b(f'v_lshl_add_u32 {t0}, {t1}, 4, {t0}')
    b(f'v_and_b32 {t1}, 3, {cc}')
    b(f'v_lshl_add_u32 v{V_PW}, {t1}, 1, {t0}')
    vm.wait(x0_ld)
    b('s_barrier')
    b(f's_cmp_lt_u32 1, s{S_N}')
    b(f's_cselect_b32 s{S_SRDX + 2}, s{S_NB}, 0')
    xdma(True)
    walk()
    b(f's_cmp_gt_u32 s80, {f32(TAU_MAX_FAST)}')
    b('s_cbranch_scc1 L_safe')
    return b


def lane_parts(b):
    c = b.ctx
    l, g, cc = uniq(c, 'l'), uniq(c, 'g'), uniq(c, 'c')
    b(f'v_bfe_u32 {l}, v{V_OR}, 4, 6')
    b(f'v_lshrrev_b32 {g}, 4, {l}')
    b(f'v_and_b32 {cc}, 15, {l}')
    return l, g, cc


def build_ramp(ctx, cfg):
    b = Block(ctx, 'ramp', lds_lat=cfg['lds_lat'])
    c = ctx
    b.cur = -50
    l, g, cc = lane_parts(b)
    xa0, xa1 = c.new('xe0'), c.new('xe1')
    b(f'v_add_u32 {xa0}, {L_XE}, v{V_XA0}')
    b(f'v_add_u32 {xa1}, {L_XE}, v{V_XA1}')
    zero = c.new('zero', 4)
    for r in range(4):
        b(f'v_mov_b32 {zero}.{r}, 0')
    dum = c.new('dum')
    b(f'v_lshlrev_b32 {dum}, 4, {g}')
    b(f'v_add_u32 {dum}, {L_DUM}, {dum}')
    qw, vw, ew = [], [], []
    b(f's_mul_i32 s3, s{S_H}, {QKE_H}')
    b(f's_add_u32 s3, s3, {L_QKE}')
    b(f's_mul_i32 s4, s{S_H}, {VE_H}')
    b(f's_add_u32 s4, s4, {L_VE}')
    a, t = c.new('qw0'), c.new('rt')
    b(f'v_mul_u32_u24 {a}, 320, {cc}')
    b(f'v_mul_u32_u24 {t}, 80, {g}')
    b(f'v_add3_u32 {a}, {a}, {t}, s3')
    e = c.new('ew0')
    b(f'v_lshlrev_b32 {e}, 8, {cc}')
    b(f'v_lshl_add_u32 {e}, {g}, 4, {e}')
    b(f'v_add_u32 {e}, s4, {e}')
    v = c.new('vw0')
    b(f'v_lshl_add_u32 {v}, {g}, 10, v{V_VE}')
    a1, e1, v1 = c.new('qw1'), c.new('ew1'), c.new('vw1')
    b(f'v_add_u32 {a1}, {16 * 320}, {a}')
    b(f'v_add_u32 {e1}, {16 * 256}, {e}')
    b(f'v_add_u32 {v1}, {16 * 256}, {v}')
    b(f'v_cmp_gt_u32 vcc, {NSLOT - 16}, {cc}')
    b(f'v_cndmask_b32 {a1}, {dum}, {a1}, vcc')
    b(f'v_cndmask_b32 {e1}, {dum}, {e1}, vcc')
    b(f'v_cmp_gt_u32 vcc, {(NSLOT - 16) // 4}, {g}')
    b(f'v_cndmask_b32 {v1}, {dum}, {v1}, vcc')
    b(f'v_cmp_gt_u32 s[82:83], 16, {l}')
    qw, ew, vw = (a, a1), (e, e1), (v, v1)
    b.cur = 0
    mf = []
    for j in range(2):
        xf = lambda s: f'%xf{j}{s}e'
        for s in range(6):
            aft = [mf[len(mf) + s - cfg['lead']]] if mf else []
            xread(b, f'xf{j}{s}e', j, s, 0, addr=(xa0, xa1), after=aft, prio=-500)
        for jd in range(3):
            mf += proj_chain(b, f'ka{j}{jd}e', WK, xf, jd, False)
        sumsq(b, f'ssk{j}e', [f'ka{j}{jd}e' for jd in range(3)], f's{S_EPSQ}')
        for jd in range(3):
            mf += proj_chain(b, f'qa{j}{jd}e', WQ, xf, jd, False)
        sumsq(b, f'ssq{j}e', [f'qa{j}{jd}e' for jd in range(3)], f's{S_EPSQ}')
        qk_norm(b, j, 'e')
        qk_pack(b, j, 'e')
        ee, et = c.new(f'ee{j}', 4), c.new(f'et{j}')
        for jd in range(3):
            for r in range(4):
                op = 'v_mul_f32' if jd == 0 and r == 0 else 'v_fmac_f32'
                b(f'{op} {ee}.0, %qa{j}{jd}e.{r}, %ka{j}{jd}e.{r}')
        for op in ('v_permlane32_swap_b32', 'v_permlane16_swap_b32'):
            b(f'v_mov_b32 {et}, {ee}.0')
            b(f'{op} {ee}.0, {et}')
            b(f'v_add_f32 {ee}.0, {ee}.0, {et}')
        b(f'v_add_f32 {ee}.0, s{S_BEE}, {ee}.0')
        for r in range(1, 4):
            b(f'v_mov_b32 {ee}.{r}, {f32(NEG)}')
        b(f'v_cndmask_b32 {ee}.0, {ee}.1, {ee}.0, s[82:83]')
        b(f'ds_write_b128 {ew[j]}, {ee} offset:192')
        b(f'ds_write_b128 {qw[j]}, %kp{j}e')
        b(f'ds_write_b128 {qw[j]}, {zero} offset:16')
        b(f'ds_write_b128 {qw[j]}, %qp{j}e offset:32')
        b(f'ds_write_b64 {qw[j]}, %tp{j}e.2:3 offset:48')
        b(f'ds_write_b64 {qw[j]}, {zero}.0:1 offset:56')
        b(f'ds_write_b64 {qw[j]}, {zero}.0:1 offset:64')
        b(f'ds_write_b64 {qw[j]}, %tp{j}e.0:1 offset:72')
        for jd in range(3):
            mf += proj_chain(b, f'va{j}{jd}e', WV, xf, jd, True)
            for r in range(4):
                x = f'%va{j}{jd}e.{r}'
                b(f'{CVT} {x}, {x}, {x}')
                b(f'ds_write_b32 {vw[j]}, {x} offset:{256 * r + 64 * jd}')
    head_part(b, cfg, after=[mf[len(mf) + s - cfg['lead']] for s in range(6)])
    return b


def build_drain(ctx, cfg):
    b = Block(ctx, 'drain', lds_lat=cfg['lds_lat'])
    c = ctx
    fl = cfg['st_flags']
    b.cur = 0
    b(f's_cmp_ge_u32 s{S_IT}, 2')
    b(f's_cselect_b32 s{S_SRDO + 2}, s{S_NB}, 0')

    def stats(name, off, after=()):
        s0, s1, red = c.new(name + '0', 4), c.new(name + '1', 4), c.new(name + 'r', 4)
        r0 = b(f'ds_read_b128 {s0}, v{V_OR} offset:{off}', prio=-600, after=after)
        r1 = b(f'ds_read_b128 {s1}, v{V_OR} offset:{off + 1024}', prio=-600, after=after)
        b(f'{M32} {red}, {vr(V_SEL, 4)}, {s0}, 0', prio=-900)
        b(f'{M32} {red}, {vr(V_SEL, 4)}, {s1}, {red}', prio=-900)
        return red

    red = stats('da', L_STAT)
    b.cur = 50
    for j in range(3):
        rs = ln_scale(b, red, j, f'drs{j}')
        ln_finish(b, lambda jc: f'y{j}{jc}', rs, f'v{V_ST4 + j}', f'v{V_ST2 + j}', f's{S_OFF + 4}', f'dyp{j}', fl)
    b(f's_mov_b32 s{S_SRDO + 2}, s{S_NB}')
    b.cur = -10
    l, g, cc = lane_parts(b)
    oe = c.new('oer')
    b(f'v_lshlrev_b32 {oe}, 9, {g}')
    b(f'v_lshl_add_u32 {oe}, {cc}, 4, {oe}')
    b(f'v_add_u32 {oe}, {L_OE}, {oe}')
    b.cur = 200
    est = []
    for t in range(2):
        slot, off, a4, a2 = uniq(c, 'slot'), uniq(c, 'off'), c.new(f'e4{t}'), c.new(f'e2{t}')
        b(f'v_add_u32 {slot}, {16 * t}, {cc}')
        slot_off(b, slot, off)
        b(f's_lshl_b32 s3, s{S_H}, 6')
        b(f'v_lshl_add_u32 {a4}, {g}, 4, {off}')
        b(f'v_add_u32 {a4}, s3, {a4}')
        b(f's_lshl_b32 s4, s{S_H}, 5')
        b(f's_add_u32 s4, s4, 256')
        b(f'v_lshl_add_u32 {a2}, {g}, 3, {off}')
        b(f'v_add_u32 {a2}, s4, {a2}')
        est.append((a4, a2))
    b.cur = 0
    mf = []
    for j in range(5):
        for p in range(6):
            t = c.new(f'df{j}{p}', 4)
            aft = [mf[len(mf) + p - cfg['lead']]] if mf else []
            if j < 3:
                b(f'ds_read_b128 {t}, v{V_OR} offset:{L_O + j * 6144 + p * 1024}', after=aft, prio=-450)
            else:
                b(f'ds_read_b128 {t}, {oe} offset:{p * 2048 + (j - 3) * 256}', after=aft, prio=-450)
        for jc in range(3):
            mf += proj_chain(b, f'z{j}{jc}', WO, lambda p: f'%df{j}{p}', jc, False)
        t = b.cur
        b.cur = 0
        sumsq(b, f'ssz{j}', [f'z{j}{jc}' for jc in range(3)], f's{S_EPSY}')
        b.cur = t
    b.cur = 0
    sp = c.new('dsp', 2)
    b(f'{CVT} {sp}.0, %ssz0, %ssz1')
    b(f'{CVT} {sp}.1, %ssz2, %ssz2')
    wr = [b(f'ds_write_b64 v{V_OT}, {sp} offset:{L_STAT}')]
    for t in range(2):
        sq = c.new(f'dsq{t}', 2)
        b(f'{CVT} {sq}.0, %ssz{3 + t}, %ssz{3 + t}')
        b(f'v_mov_b32 {sq}.1, 0')
        wr.append(b(f'ds_write_b64 v{V_OT}, {sq} offset:{L_O + 2048 * t}'))
    bar = b('s_barrier', after=wr)
    b(f'v_xor_b32 v{V_OR}, {TOG}, v{V_OR}')
    ra = stats('db', L_STAT, after=[bar])
    rb = [stats(f'dc{t}', L_O + 2048 * t, after=[bar]) for t in range(2)]
    b.cur = 300
    for j in range(5):
        rs = ln_scale(b, ra if j < 3 else rb[j - 3], j if j < 3 else 0, f'ers{j}')
        if j < 3:
            ln_finish(b, lambda jc: f'z{j}{jc}', rs, f'v{V_ST4 + j}', f'v{V_ST2 + j}', f's{S_OFF + 3}', f'eyp{j}', fl)
        else:
            ln_finish(b, lambda jc: f'z{j}{jc}', rs, est[j - 3][0], est[j - 3][1], '0', f'eyp{j}', fl)
    return b


def keys_of(ctx, names):
    return [('%', n, e) for n in names for e in range(ctx.size[n])]


def variant(cfg, safe, pre, log):
    tag = 'safe' if safe else 'fast'
    label = f'L_loop_{tag}'
    ctx = Ctx()
    lb = build_loop(ctx, cfg, safe, label)
    loop = lb.schedule()
    assert not lb.open_reads
    mp, _, entry = allocate(ctx, loop, POOL, True)
    carried = sorted({k[1] for k in entry})
    ys = [n for n in carried if n.startswith('y')]
    heads = [n for n in carried if not n.startswith('y')]
    pins = {n: (ctx.size[n], ctx.phys[n]) for n in carried}

    def fresh(names):
        c2 = Ctx()
        for n in names:
            c2.new(n, pins[n][0], pins[n][1])
        return c2

    rc = fresh(heads)
    rb = build_ramp(rc, cfg)
    ramp = rb.schedule()
    assert not rb.open_reads
    allocate(rc, ramp, POOL, False, live_out=keys_of(rc, heads))
    dc = fresh(ys)
    db = build_drain(dc, cfg)
    drain = db.schedule()
    allocate(dc, drain, POOL, False, live_in=keys_of(dc, ys))
    ramp, loop, drain = physical(rc, ramp), physical(ctx, loop), physical(dc, drain)
    ramp, n0 = pad_hazards(ctx, ramp, pre)
    loop, n1 = pad_hazards(ctx, loop, ramp)
    loop, n2 = pad_hazards(ctx, loop, loop)
    drain, n3 = pad_hazards(ctx, drain, loop)
    log(f'{tag}: ramp {rb.cycles} loop {lb.cycles} (stall {lb.stall}, pressure {mp}/{len(POOL)}) drain {db.cycles}; pads {n0} {n1} {n2} {n3}')
    txt = [f'    {i.text}' for i in ramp]
    txt.append('.p2align 6')
    txt.append(f'{label}:')
    txt += [f'    {i.text}' for i in loop]
    txt += [f'    {i.text}' for i in drain]
    txt.append('    s_endpgm')
    return txt


def generate(cfg, log=print):
    uniq.k = 0
    ref = open(f'/code/{NAME}.s.ref').read().split('\n')
    head = [x for x in ref if x.startswith(';') and '@launch' not in x]
    head = head[:13]
    ctx = Ctx()
    pb = build_prologue(ctx, cfg)
    pro = pb.schedule(inorder=True)
    allocate(ctx, pro, POOL, False)
    pro = physical(ctx, pro)
    pro, n = pad_hazards(ctx, pro)
    log(f'prologue {pb.cycles} cycles issue, {len(pro)} instructions, pads {n}')
    out = head + [f'; @launch grid=(256,1,1) block=(256,1,1) lds={LDS_BYTES}',
                  '; Generated by gen/kernel.py. One workgroup per CU, one attention head per wave.',
                  '.amdgcn_target "amdgcn-amd-amdhsa--gfx950"', '.text', f'.globl {NAME}_kernel', '.p2align 8',
                  f'.type {NAME}_kernel,@function', f'{NAME}_kernel:']
    out += [i.text if i.kind == 'label' else f'    {i.text}' for i in pro]
    out += variant(cfg, False, pro, log)
    out.append('L_safe:')
    out += variant(cfg, True, pro, log)
    out += ['L_done:', '    s_endpgm', '.section .rodata,"a"', '.p2align 6', f'.amdhsa_kernel {NAME}_kernel',
            '  .amdhsa_next_free_vgpr 512', '  .amdhsa_next_free_sgpr 102', '  .amdhsa_accum_offset 256',
            '  .amdhsa_group_segment_fixed_size 0', '  .amdhsa_kernarg_size 96', '  .amdhsa_user_sgpr_count 2',
            '  .amdhsa_user_sgpr_kernarg_segment_ptr 1', '  .amdhsa_system_sgpr_workgroup_id_x 1',
            '  .amdhsa_float_denorm_mode_32 3', '.end_amdhsa_kernel', '']
    return '\n'.join(out)


if __name__ == '__main__':
    path = sys.argv[1] if len(sys.argv) > 1 else f'/code/{NAME}.s'
    open(path, 'w').write(generate(CFG))
```

```python
import bisect
import random
import re

TRANS = ('v_exp_', 'v_log_', 'v_rcp_', 'v_rsq_', 'v_sqrt_', 'v_sin_', 'v_cos_')
SCC_DEF = ('s_add_', 's_sub_', 's_and_', 's_or_', 's_xor_', 's_lshl_', 's_lshr_', 's_ashr_', 's_cmp_', 's_addc',
           's_subb', 's_min_', 's_max_', 's_andn2', 's_not_', 's_bfe_', 's_addk', 's_cmpk', 's_bitcmp')
SCC_USE = ('s_cselect', 's_cbranch_scc', 's_addc', 's_subb')

_REG = re.compile(r'^-?(?:abs\()?(%[A-Za-z_][A-Za-z0-9_]*(?:\.\d+(?::\d+)?)?|[vas]\d+|[vas]\[\d+:\d+\]|vcc|exec|exec_lo|exec_hi|m0|vcc_lo|vcc_hi)\)?$')
_SYM = re.compile(r'%([A-Za-z_][A-Za-z0-9_]*)(?:\.(\d+)(?::(\d+))?)?')


class Ctx:
    def __init__(self):
        self.size = {}
        self.phys = {}

    def new(self, name, n=1, phys=None):
        assert name not in self.size or self.size[name] == n, name
        self.size[name] = n
        if phys is not None:
            self.phys[name] = phys
        return '%' + name

    def keys(self, tok):
        m = _REG.match(tok)
        if not m:
            return []
        t = m.group(1)
        if t[0] == '%':
            m = _SYM.match(t)
            name = m.group(1)
            n = self.size[name]
            if m.group(2) is None:
                lo, hi = 0, n - 1
            else:
                lo = int(m.group(2))
                hi = int(m.group(3)) if m.group(3) else lo
            assert hi < n, tok
            return [('%', name, i) for i in range(lo, hi + 1)]
        if t in ('vcc', 'vcc_lo', 'vcc_hi'):
            return ['vcc']
        if t.startswith('exec'):
            return ['exec']
        if t == 'm0':
            return ['m0']
        if '[' in t:
            lo, hi = map(int, t[2:-1].split(':'))
            return [(t[0], i) for i in range(lo, hi + 1)]
        return [(t[0], int(t[1:]))]

    def subst(self, text):
        def rep(m):
            name = m.group(1)
            bank, base = self.phys[name]
            if m.group(2) is None:
                lo, hi = 0, self.size[name] - 1
            else:
                lo = int(m.group(2))
                hi = int(m.group(3)) if m.group(3) else lo
            if lo == hi:
                return f'{bank}{base + lo}'
            assert (base + lo) % 2 == 0, (text, name, base, lo)
            return f'{bank}[{base + lo}:{base + hi}]'
        return _SYM.sub(rep, text)


class Ins:
    def __init__(self, ctx, text, prio=None, after=(), full=False, grp=None, lat=None, tag=''):
        self.text = text
        self.prio = prio
        self.after = list(after)
        self.grp = grp
        self.lat = lat
        self.gap = None
        self.tag = tag
        self.defs, self.uses = [], []
        self.A = self.B = self.C = ()
        self.data = ()
        self.dpp_src = ()
        self.parse(ctx, full)

    def parse(self, ctx, full):
        s = self.text.split(';')[0].strip()
        op, _, rest = s.partition(' ')
        self.op = op
        parts = [p.strip() for p in rest.split(',')] if rest.strip() else []
        mods = ''
        ops = []
        for i, p in enumerate(parts):
            if ' ' in p:
                head, _, tail = p.partition(' ')
                ops.append(head)
                mods = tail + ' ' + ','.join(parts[i + 1:])
                break
            ops.append(p)
        K = [ctx.keys(o) for o in ops]
        flat = lambda L: [k for x in L for k in x]
        self.dur = 4
        if op.endswith(':'):
            self.kind = 'label'
        elif op.startswith('v_mfma'):
            self.kind = 'mfma'
            self.defs = K[0]
            self.A, self.B, self.C = K[1], K[2], K[3]
            self.uses = flat(K[1:])
        elif op.startswith('v_'):
            self.kind = 'valu'
            self.trans = op.startswith(TRANS)
            if self.trans or 'permlane' in op or op.startswith('v_mul_lo') or op.startswith('v_mul_hi'):
                self.dur = 8
            if 'permlane' in op:
                self.defs = flat(K)
                self.uses = flat(K)
                self.dpp_src = self.uses
            else:
                self.defs = K[0]
                self.uses = flat(K[1:])
                if op.startswith('v_fmac') or op.startswith('v_writelane'):
                    self.uses += K[0]
                if op.endswith('_dpp'):
                    self.dpp_src = K[1]
                    if 'row_mask:0xf' not in mods and not full:
                        self.uses += K[0]
        elif op.startswith('ds_read') or op.startswith(('ds_bpermute', 'ds_permute')):
            self.kind = 'dsr'
            self.defs = K[0]
            self.uses = flat(K[1:])
        elif op.startswith('ds_write'):
            self.kind = 'dsw'
            self.uses = flat(K)
            self.dur = 4 + 4 * (len(self.uses) - 1)
        elif op.startswith('buffer_load'):
            if re.search(r'\blds\b', mods):
                self.kind = 'dma'
                self.uses = flat(K) + ['m0']
            else:
                self.kind = 'vld'
                self.defs = K[0]
                self.uses = flat(K[1:])
        elif op.startswith('global_load'):
            self.kind = 'vld'
            self.defs = K[0]
            self.uses = flat(K[1:])
        elif op.startswith('buffer_store'):
            self.kind = 'vst'
            self.uses = flat(K)
            self.data = K[0]
        elif op.startswith('s_load') or op.startswith('s_memtime') or op.startswith('s_memrealtime'):
            self.kind = 'smem'
            self.defs = K[0]
            self.uses = flat(K[1:])
        elif op == 's_waitcnt':
            self.kind = 'wait'
        elif op == 's_barrier':
            self.kind = 'bar'
        elif op == 's_nop':
            self.kind = 'nop'
            self.dur = 4 * (int(ops[0]) + 1)
        elif op.startswith('s_'):
            self.kind = 'salu'
            if op.startswith(('s_cmp', 's_cbranch', 's_branch', 's_endpgm', 's_setprio', 's_bitcmp')):
                self.uses = flat(K)
            else:
                self.defs = K[0]
                self.uses = flat(K[1:])
            if op.startswith(SCC_DEF):
                self.defs = self.defs + ['scc']
            if op.startswith(SCC_USE):
                self.uses = self.uses + ['scc']
        else:
            raise ValueError(self.text)
        if op.startswith('buffer_') and ops[-1].startswith('s'):
            self.dur = 8
        if self.kind in ('valu', 'mfma', 'dsr', 'dsw', 'dma', 'vld', 'vst'):
            self.uses = self.uses + ['exec']

    @property
    def states(self):
        if self.kind == 'label':
            return 0
        if self.kind == 'nop':
            return self.dur // 4
        return 1


MEM = ('dsr', 'dsw', 'dma', 'vld', 'vst')


def is_vreg(k):
    return isinstance(k, tuple) and k[0] in ('%', 'v', 'a')


def is_sreg(k):
    return k == 'vcc' or (isinstance(k, tuple) and k[0] == 's')


def need_states(p, c):
    n = 0
    pd, cu, cd = set(p.defs), set(c.uses), set(c.defs)
    raw = pd & cu
    if p.kind == 'mfma':
        if c.kind == 'mfma':
            if pd & (set(c.A) | set(c.B)):
                n = max(n, 8)
            if pd & set(c.C) and (list(p.defs) != list(c.C) or p.op != c.op):
                n = max(n, 6)
        elif (raw or pd & cd) and c.kind in ('valu',) + MEM:
            n = max(n, 8)
        if c.kind == 'valu' and set(p.C) & cd:
            n = max(n, 3)
    elif p.kind == 'valu':
        vraw = [k for k in raw if is_vreg(k)]
        sraw = [k for k in raw if is_sreg(k)]
        if c.kind == 'mfma' and vraw:
            n = max(n, 2)
        if p.op.startswith('v_dot') and (vraw or pd & cd) and c.kind in ('valu', 'mfma') + MEM:
            n = max(n, 3)
        if c.kind == 'valu':
            if vraw and p.trans and not c.trans:
                n = max(n, 1)
            if pd & set(c.dpp_src):
                n = max(n, 2)
            if vraw and c.op.startswith(('v_readfirstlane', 'v_readlane')):
                n = max(n, 1)
            if sraw:
                n = max(n, 4 if c.op.startswith(('v_readlane', 'v_writelane')) else 2)
        if c.kind in MEM and vraw and p.trans:
            n = max(n, 1)
        if c.kind in ('dma', 'vld', 'vst') and sraw:
            n = max(n, 5)
        if c.kind in ('salu', 'smem') and sraw:
            n = max(n, 2)
    elif p.kind == 'salu':
        if 'm0' in pd and c.kind == 'dma':
            n = max(n, 1)
    elif p.kind == 'vst':
        if len(p.data) >= 3 and set(p.data) & cd:
            n = max(n, 2)
    if p.kind in ('dsr', 'vld') and c.kind == 'valu' and pd & set(c.dpp_src):
        n = max(n, 2)
    return n


def pad_hazards(ctx, seq, pre=()):
    out = list(pre)
    base = len(out)
    added = 0
    for c in seq:
        if c.kind != 'label':
            gap = 0
            need = 0
            for p in reversed(out):
                if gap >= 9:
                    break
                need = max(need, need_states(p, c) - gap)
                gap += p.states
            if need > 0:
                out.append(Ins(ctx, f's_nop {need - 1}', tag='pad'))
                added += need
        out.append(c)
    return out[base:], added


class Timer:
    QUEUE = 28

    def __init__(self):
        self.t = 0
        self.vec = 0
        self.pipe = 0
        self.valu_end = -100
        self.mblock = 0
        self.dsblock = 0
        self.ldsq = 0
        self.mop = 'v_mfma_f32_16x16x32_bf16'

    def when(self, i):
        k = i.kind
        if k == 'mfma':
            return max(self.t, self.vec, self.pipe + (4 if i.op[:19] != self.mop[:19] else 0), self.mblock)
        if k == 'valu':
            return max(self.t, self.vec)
        if k in ('dsr', 'dsw'):
            return max(self.t, self.vec, self.valu_end + 8, self.dsblock, self.ldsq - self.QUEUE)
        if k in MEM:
            return max(self.t, self.vec, self.valu_end + 8)
        return self.t

    def issue(self, i):
        w = self.when(i)
        k = i.kind
        if k == 'label':
            return w
        if k == 'mfma':
            self.t, self.vec, self.pipe = w + 4, w + (4 if '16x16x16' in i.op else 8), w + 16
            self.mop = i.op
        elif k == 'valu':
            self.t = self.vec = self.valu_end = w + i.dur
        elif k in MEM:
            self.t = self.vec = w + i.dur
            if k == 'vst':
                self.mblock = w + 4 + 4 * len(i.data)
            if k == 'dsr':
                self.ldsq = max(self.ldsq, w) + (16 if 'b128' in i.op or 'read2' in i.op else 8)
            if k == 'dsw':
                self.dsblock = w + {8: 32 if 'b32' in i.op else 20, 12: 32, 16: 44, 20: 56}[i.dur]
        else:
            self.t = w + i.dur
        return w


class Block:
    def __init__(self, ctx, name, lds_lat=128):
        self.ctx = ctx
        self.name = name
        self.ins = []
        self.lds_lat = lds_lat
        self.cur = 0.0

    def __call__(self, text, **kw):
        i = Ins(self.ctx, text, **kw)
        if i.prio is None:
            i.prio = self.cur
        i.seq = len(self.ins)
        self.ins.append(i)
        return i

    def build_deps(self):
        lastdef, users = {}, {}
        n = len(self.ins)
        self.pred = [dict() for _ in range(n)]
        self.scc_users = {}
        if self.free_scc:
            cur = None
            for c in self.ins:
                if 'scc' in c.uses:
                    self.scc_users.setdefault(cur.seq, []).append(c)
                    c.uses = [k for k in c.uses if k != 'scc']
                    c.after.append(cur)
                c.sccdef = 'scc' in c.defs
                if c.sccdef:
                    cur = c
                    c.defs = [k for k in c.defs if k != 'scc']
        for c in self.ins:
            P = self.pred[c.seq]
            for k in c.uses:
                if k in lastdef:
                    P[lastdef[k].seq] = 'raw'
            for k in c.defs:
                if k in lastdef:
                    P.setdefault(lastdef[k].seq, 'waw')
                for u in users.get(k, ()):
                    if u is not c:
                        P.setdefault(u.seq, 'war')
            for a in c.after:
                assert a.seq != c.seq
                P.setdefault(a.seq, 'ord')
            for k in c.uses:
                users.setdefault(k, []).append(c)
            for k in c.defs:
                lastdef[k] = c
                users[k] = []
        for d, us in self.scc_users.items():
            group = {d} | {u.seq for u in us}
            for u in us:
                for p in self.pred[u.seq]:
                    if p not in group:
                        self.pred[d].setdefault(p, 'ord')

    def prepare(self):
        self.build_deps()
        n = len(self.ins)
        self.succ = [[] for _ in range(n)]
        self.haz = [[] for _ in range(n)]
        self.dsneed = [[] for _ in range(n)]
        self.vmneed = [[] for _ in range(n)]
        self.first = [0] * n
        for c in self.ins:
            for p, why in self.pred[c.seq].items():
                pi = self.ins[p]
                self.succ[p].append(c.seq)
                ns = need_states(pi, c)
                if ns:
                    self.haz[c.seq].append((p, ns))
                if pi.kind == 'dsr' and (why in ('raw', 'waw') or c.kind == 'bar'):
                    self.dsneed[c.seq].append(p)
                elif pi.kind == 'dsw' and c.kind == 'bar':
                    self.dsneed[c.seq].append(p)
                elif pi.kind == 'dsr' and c.kind == 'dma' and pi in c.after:
                    self.dsneed[c.seq].append(p)
                if self.auto_vm:
                    if pi.kind == 'vld' and why in ('raw', 'waw') and c.kind != 'vld':
                        self.vmneed[c.seq].append(p)
                    elif pi.kind == 'dma' and c.kind in ('dsr', 'bar') and pi in c.after:
                        self.vmneed[c.seq].append(p)
            for p, back in self.entry:
                self.first[c.seq] = max(self.first[c.seq], need_states(p, c) - back)
        cur, self.nuse = {}, []
        self.born = [[] for _ in range(n)]
        self.reads = [[] for _ in range(n)]
        self.live0 = 0
        first_use = []
        for c in self.ins:
            us = {k for k in c.uses if k[0] == '%'}
            for k in us:
                if k not in cur:
                    cur[k] = len(self.nuse)
                    self.nuse.append(0)
                    self.live0 += 1
                    first_use.append(k)
                self.nuse[cur[k]] += 1
                self.reads[c.seq].append(cur[k])
            for k in c.defs:
                if k[0] == '%' and k not in us:
                    cur[k] = len(self.nuse)
                    self.nuse.append(0)
                    self.born[c.seq].append(cur[k])
        for k in (first_use if self.cyclic else self.live_out):
            self.nuse[cur[k]] += 1
        self.prepared = True

    def schedule(self, inorder=False, noise=None):
        if not self.prepared:
            self.prepare()
        ctx, ins = self.ctx, self.ins
        n = len(ins)
        left = [len(p) for p in self.pred]
        prio = [(i.prio + (noise[i.seq] if noise else 0), i.seq) for i in ins]
        out = []
        state_of = [0] * n
        okstate = list(self.first)
        dsn = [-1] * n
        dsidx = {}
        vmn = [-1] * n
        vmidx = {}
        vm_at = []
        open_scc = []
        nuse = list(self.nuse)
        live = [self.live0]
        ready = []
        st = dict(n=0, covered=-1, stall=0, vm=self.vm_entry, vcov=-1)
        tm = Timer()
        ds = []
        done_at = []
        lat = self.lds_lat

        def make_ready(c):
            for p, ns in self.haz[c]:
                okstate[c] = max(okstate[c], state_of[p] + 1 + ns)
            for p in self.dsneed[c]:
                dsn[c] = max(dsn[c], dsidx[p])
            for p in self.vmneed[c]:
                vmn[c] = max(vmn[c], vmidx[p])
            bisect.insort(ready, prio[c])

        def emit(i):
            i.time = tm.issue(i)
            st['n'] += i.states
            out.append(i)

        def emit_wait(target, slack=0):
            j = target
            while j + 1 < len(ds) and done_at[j + 1] <= tm.t + slack:
                j += 1
            cnt = len(ds) - 1 - j
            if cnt > 15:
                cnt = 15
                j = len(ds) - 1 - 15
            done = done_at[j]
            emit(Ins(ctx, f's_waitcnt lgkmcnt({cnt})', tag='w'))
            if done > tm.t + slack:
                st['stall'] += done - tm.t
                tm.t = done
            st['covered'] = j

        def emit_vmwait(j):
            cnt = len(vm_at) - 1 - j
            assert cnt <= 63
            emit(Ins(ctx, f's_waitcnt vmcnt({cnt})', tag='w'))
            if vm_at[j] > tm.t:
                st['stall'] += vm_at[j] - tm.t
                tm.t = vm_at[j]
            st['vcov'] = j

        def commit(c):
            state_of[c.seq] = st['n']
            if self.auto_vm and c.kind in ('vld', 'dma', 'vst') and st['vm'] > tm.t:
                tm.t = st['vm']
            emit(c)
            if c.kind in ('vld', 'dma', 'vst'):
                vmidx[c.seq] = len(vm_at)
                d = max(c.time + (c.lat or self.vm_lat), self.vm_first)
                vm_at.append(max(d, vm_at[-1] + (self.vm_rate if c.kind == 'dma' else 8)) if vm_at else d)
            if c.kind == 'vld':
                st['vm'] = c.time + self.gap_ld
            if c.kind in ('dsr', 'dsw'):
                dsidx[c.seq] = len(ds)
                ds.append(c)
                d = c.time + (c.lat if c.lat is not None else lat)
                done_at.append(max(d, done_at[-1]) if done_at else d)
            elif c.kind == 'vst':
                st['vm'] = c.time + (c.gap or self.gap_st)
            elif c.kind == 'dma':
                st['vm'] = c.time + (self.gap_dma if len(vm_at) >= self.burst else 24)
            for v in self.reads[c.seq]:
                nuse[v] -= 1
                live[0] -= nuse[v] == 0
            live[0] += sum(nuse[v] > 0 for v in self.born[c.seq])
            if self.fifo and c.kind in ('vld', 'dma', 'vst'):
                if len(vm_at) >= self.fifo:
                    st['vm'] = max(st['vm'], vm_at[len(vm_at) - self.fifo])
                elif len(vm_at) >= self.fifo - self.fifo_used:
                    st['vm'] = max(st['vm'], self.vm_first)
            if self.free_scc:
                if c in open_scc:
                    open_scc.remove(c)
                open_scc.extend(self.scc_users.get(c.seq, ()))
            ready.remove(prio[c.seq])
            for s in self.succ[c.seq]:
                left[s] -= 1
                if left[s] == 0:
                    make_ready(s)

        for i in range(n):
            if left[i] == 0:
                make_ready(i)
        while ready:
            if inorder:
                c = ins[min(r[1] for r in ready)]
                if dsn[c.seq] > st['covered']:
                    emit_wait(dsn[c.seq])
                if okstate[c.seq] > st['n']:
                    emit(Ins(ctx, f's_nop {okstate[c.seq] - st["n"] - 1}', tag='pad'))
                commit(c)
                continue
            cov, now = st['covered'], st['n']
            tv = max(tm.t, tm.vec)
            shadow = tm.t < tm.vec
            sal, bar, mf, mem, late, va, blocked, hz = [], [], [], [], [], [], [], False
            vblocked = []
            cand = ready
            if self.limit:
                cand = [r for r in ready if len(self.born[r[1]]) < 2 or live[0] + len(self.born[r[1]]) <= self.limit]
                if not any(ins[q].kind != 'bar' for _, q in cand):
                    cand = cand + [min((r for r in ready if r not in cand), key=lambda r: r[1], default=None)]
                    cand = sorted(r for r in cand if r)
            for _, q in cand:
                c = ins[q]
                if open_scc and c.sccdef and c not in open_scc:
                    continue
                if vmn[q] > st['vcov']:
                    vblocked.append(q)
                elif dsn[q] > cov:
                    blocked.append(q)
                elif okstate[q] > now:
                    hz = True
                else:
                    k = c.kind
                    if k == 'valu':
                        va.append(c)
                    elif k == 'mfma':
                        mf.append(c)
                    elif k in MEM:
                        if tm.when(c) <= tv and (k in ('dsr', 'dsw') or st['vm'] <= tv):
                            mem.append(c)
                        else:
                            late.append(c)
                    elif k == 'bar':
                        bar.append(c)
                    else:
                        sal.append(c)
            want = [dsn[q] for q in blocked if done_at[dsn[q]] <= tm.t + self.slack]
            if self.auto_vm:
                vw = [vmn[q] for q in vblocked if vm_at[vmn[q]] <= tm.t]
                if vw:
                    emit_vmwait(max(vw))
                    continue
                if not mf:
                    if bar:
                        commit(bar[0])
                        continue
                    if want:
                        emit_wait(min(want), self.slack)
                        continue
                    go = [c for c in late if (c.kind in ('dsr', 'dsw') and tm.dsblock <= tv + 8) or (c.kind not in ('dsr', 'dsw') and st['vm'] <= tv + 8)]
                    best = min(mem + go + va + sal, key=lambda c: prio[c.seq], default=None)
                    if best is not None and not mem:
                        if best.kind in MEM and sal:
                            best = sal[0]
                        commit(best)
                        continue
            if shadow:
                if bar:
                    commit(bar[0])
                    continue
                if want:
                    emit_wait(min(want), self.slack)
                    continue
                if sal:
                    commit(sal[0])
                    continue
                j = cov + 1
                while j < len(ds) and done_at[j] <= tm.t and ds[j].kind != 'dsr':
                    j += 1
                if j < len(ds) and done_at[j] <= tm.t:
                    emit_wait(j)
                    continue
            if mf and tm.when(mf[0]) <= tv:
                if va and mf[0].prio >= 0 and tv < tm.pipe + self.cadence:
                    commit(va[0])
                else:
                    commit(mf[0])
                continue
            if not mf and tm.pipe <= tv:
                wm = [dsn[q] for q in blocked if ins[q].kind == 'mfma' and done_at[dsn[q]] <= tm.t + self.slack]
                if wm:
                    emit_wait(min(wm), self.slack)
                    continue
            room = (tm.when(mf[0]) - tv) if mf else 1000
            if mem:
                fit = [c for c in mem if c.dur <= room]
                if room >= 8 and mem[0].dur > 4:
                    commit(mem[0])
                    continue
                if fit:
                    commit(fit[0])
                    continue
                if room >= 8:
                    commit(mem[0])
                    continue
            if va:
                fit = [c for c in va if c.dur <= room]
                if fit:
                    c = fit[0]
                    if room == 8 and c.dur == 4:
                        eights = [x for x in fit if x.dur == 8]
                        if eights and len(fit) - len(eights) == 1:
                            follow = any(left[s] == 1 and ins[s].kind == 'valu' and ins[s].dur == 4 and not self.haz[s]
                                         for s in self.succ[c.seq])
                            if not follow:
                                c = eights[0]
                    commit(c)
                    continue
                if not mf:
                    commit(va[0])
                    continue
            if sal:
                commit(sal[0])
                continue
            if mf:
                commit(mf[0])
                continue
            if want:
                emit_wait(min(want), self.slack)
                continue
            if bar:
                commit(bar[0])
                continue
            if hz:
                emit(Ins(ctx, 's_nop 0', tag='pad'))
                continue
            opts = [(max(tm.when(c), st['vm'] if c.kind not in ('dsr', 'dsw') else 0), 0, c) for c in late[:1]]
            opts += [(done_at[dsn[q]], 1, dsn[q]) for q in blocked]
            opts += [(vm_at[vmn[q]], 2, vmn[q]) for q in vblocked]
            _, how, x = min(opts, key=lambda o: o[:2])
            (commit, emit_wait, emit_vmwait)[how](x)
        assert not any(left), 'dependency cycle'
        self.open_reads = [x for x in ds[st['covered'] + 1:] if x.kind == 'dsr']
        self.out = out
        self.cycles = max(tm.t, tm.vec)
        self.stall = st['stall']
        self.vm_exit = st['vm'] - self.cycles
        return out

    prepared = False
    slack = 0
    gap_st = 0
    gap_dma = 0
    vm_entry = 0
    auto_vm = False
    limit = 0
    live_out = ()
    cyclic = False
    fifo = 0
    fifo_used = 0
    cadence = 0
    burst = 0
    free_scc = False
    gap_ld = 0
    vm_lat = 700
    vm_first = 0
    vm_rate = 0
    entry = ()


def occupancy(ctx, seq, cyclic, live_out=(), live_in=()):
    n = len(seq)
    N = 2 * n
    full = (1 << N) - 1
    occ = {}

    def mark(k, a, b):
        m = ((1 << (b - a + 1)) - 1) << a
        m = (m & full) | (m >> N if cyclic else 0)
        occ[k] = occ.get(k, 0) | m

    D = [[k for k in i.defs if k[0] == '%'] for i in seq]
    Us = [[k for k in i.uses if k[0] == '%'] for i in seq]
    live = set(live_out)
    if cyclic:
        for p in range(n - 1, -1, -1):
            live.difference_update(D[p])
            live.update(Us[p])
    end = {k: N - 1 for k in live}
    nxt = {}
    for p in range(n - 1, -1, -1):
        i = seq[p]
        early = i.kind in ('mfma', 'dsr', 'vld')
        far = 0
        if i.kind in ('dsr', 'vld'):
            far = min([first for first in (nxt.get(k) for k in D[p]) if first is not None], default=N - 1) if D[p] else 0
        for k in D[p]:
            a = 2 * p + (0 if early else 1)
            e = max(end.pop(k, 0), 2 * p + 1, far)
            if i.kind == 'mfma':
                e = max(e, 2 * (p + 9))
            mark(k, a, e)
        for k in Us[p]:
            e = 2 * p
            if i.kind == 'vst' and k in i.data:
                e = 2 * (p + 3)
            elif i.kind == 'mfma' and k in i.C:
                e = 2 * (p + 4)
            if k in end:
                end[k] = max(end[k], e)
            else:
                end[k] = e
            nxt[k] = 2 * p
    for k, e in end.items():
        mark(k, 0, e)
    if not cyclic:
        extra = set(end) - set(live_in)
        assert not extra, f'undefined at block entry: {sorted(extra)[:8]}'
    return occ, set(end)


def pressure(occ, N, keep=lambda k: True):
    diff = [0] * (N + 1)
    for k, m in occ.items():
        if not keep(k):
            continue
        edges = m ^ (m << 1)
        sign = 1
        while edges:
            low = edges & -edges
            diff[low.bit_length() - 1] += sign
            sign = -sign
            edges ^= low
    out, run = [], 0
    for x in range(N):
        run += diff[x]
        out.append(run)
    return out


def allocate(ctx, seq, pool, cyclic, live_out=(), live_in=(), tries=400, seed=0):
    occ, entry = occupancy(ctx, seq, cyclic, live_out, live_in)
    names = sorted({k[1] for k in occ})
    N = 2 * len(seq)
    poolset = set(pool)
    fixed = {r: 0 for r in pool}
    todo = []
    for nm in names:
        if nm in ctx.phys:
            bank, base = ctx.phys[nm]
            if bank == 'v':
                for e in range(ctx.size[nm]):
                    if base + e in poolset:
                        m = occ.get(('%', nm, e), 0)
                        assert not fixed[base + e] & m, f'pinned overlap {nm}'
                        fixed[base + e] |= m
        else:
            todo.append(nm)
    press = pressure(occ, N, lambda k: k[1] in todo or (ctx.phys[k[1]][0] == 'v' and ctx.phys[k[1]][1] + k[2] in poolset))
    masks = {nm: [occ.get(('%', nm, e), 0) for e in range(ctx.size[nm])] for nm in todo}
    length = {nm: sum(bin(m).count('1') for m in masks[nm]) for nm in todo}

    union = {}
    for nm in todo:
        m = 0
        for x in masks[nm]:
            m |= x
        union[nm] = m
    full = (1 << N) - 1
    peak = press.index(max(press))
    rng = random.Random(seed)
    for t in range(tries):
        rot = (peak if t % 3 == 0 else rng.randrange(N)) if cyclic else 0
        jit = 0 if t == 0 else rng.choice((0, 4, 16, 60))

        def start(nm):
            m = union[nm]
            m = ((m >> rot) | (m << (N - rot))) & full
            return (m & -m).bit_length() + rng.random() * jit

        order = sorted(todo, key=lambda nm: (start(nm), -ctx.size[nm], -length[nm]))
        busy = dict(fixed)
        res = {}
        ok = True
        mode = t % 4
        for nm in order:
            sz = ctx.size[nm]
            mk = masks[nm]
            opts = [b for b in pool if (sz == 1 or b % 2 == 0)
                    and all(busy.get(b + e, full) & mk[e] == 0 and (b + e) in poolset for e in range(sz))]
            if not opts:
                ok = False
                break
            u = union[nm]
            if sz >= 4:
                opts = [b for b in opts if (b + sz - pool[0]) % 4 == 0] or opts
                if mode & 1:
                    b = max(opts, key=lambda b: sum(bin(busy[b + e]).count('1') for e in range(sz)))
                else:
                    b = opts[0]
            else:
                def mates(b):
                    q = pool[0] + (b - pool[0]) // 4 * 4
                    return sum(bin(busy.get(r, full) & u).count('1') for r in range(q, q + 4))
                b = max(opts, key=mates) if mode & 2 or True else opts[-1]
            res[nm] = b
            for e in range(sz):
                busy[b + e] |= mk[e]
        if ok:
            for nm, b in res.items():
                ctx.phys[nm] = ('v', b)
            return max(press), press, entry
    raise RuntimeError(f'allocation failed, max pressure {max(press)} of {len(pool)}')


def physical(ctx, seq):
    out = []
    for i in seq:
        j = Ins(ctx, ctx.subst(i.text), tag=i.tag)
        out.append(j)
    return out


def estimate(seq):
    tm = Timer()
    for i in seq:
        i.time = tm.issue(i)
    return max(tm.t, tm.vec)


def chain_count(seq):
    prev, n = None, 0
    for i in seq:
        if i.kind == 'mfma':
            if prev is not None and list(prev.defs) == list(i.C) and i.time - prev.time == 16:
                n += 1
            prev = i
    return n


def fix_vmcnt(ctx, seq):
    w = [p for p, i in enumerate(seq) if i.tag == 'vmw']
    assert len(w) == 1
    cnt, p = 0, w[0] - 1
    while seq[p].kind != 'dma':
        cnt += seq[p].kind in ('vst', 'vld')
        p -= 1
    assert p < 0
    seq[w[0]].text = f's_waitcnt vmcnt({cnt})'
```

```python
from parts import *


class Rec:
    def __init__(self, ctx):
        self.ctx = ctx
        self.cur = 0
        self.items = []

    def __call__(self, text, **kw):
        self.items.append((text, kw))


def tile0(ctx, safe):
    xf = lambda s: f'%xf0{s}'
    for s in range(6):
        ctx.new(f'xf0{s}', 4)
    m = Rec(ctx)
    for nm, w, xa in (('ka', WK, False), ('qa', WQ, False), ('va', WV, True)):
        for jd in range(3):
            proj_chain(m, f'{nm}0{jd}', w, xf, jd, xa)
    v = Rec(ctx)
    need = [6 * (k // 4 + 1) for k in range(24)]
    if safe:
        sumsq(v, 'ssk0', [f'ka0{jd}' for jd in range(3)], f's{S_EPSQ}')
        sumsq(v, 'ssq0', [f'qa0{jd}' for jd in range(3)], f's{S_EPSQ}')
        qk_norm(v, 0)
        qk_pack(v, 0)
        need += [99] * (len(v.items) - 24)
    else:
        half_raw(v, 0, 'k')
        half_raw(v, 0, 'q')
        half_norm(v, 0)
        half_scale(v, 0)
        need += [36] * (len(v.items) - 24)
        half_check(v, 0)
        need += [99, 99]
    return m.items, v.items, need


def head_part(b, cfg, safe, after=()):
    m, v, need = tile0(b.ctx, safe)
    hm, cut = cfg['hm'], cfg['cut']
    assert cut <= len(v) and (cut == 0 or need[cut - 1] < hm)
    rd = []
    for s in range(6):
        aft = [after[s]] if after else []
        rd.append(xread(b, f'xf0{s}', 0, s, L_X, after=aft, prio=-500))
    ch = []
    for text, kw in m[:hm]:
        ch.append(b(text, **kw))
        b.cur += 0.01
    b.cur += cfg['head_prio']
    for text, kw in v[:cut]:
        b(text, **kw)
    return rd, ch


def lds_write(b, addr, t, n, off, mode, after=()):
    w = min(n, 4 >> mode)
    return [b(f'ds_write_b{32 * w} v{addr}, {t}.{k}' + (f':{k + w - 1}' if w > 1 else '') + f' offset:{off + 4 * k}', prio=-100, after=after)
            for k in range(0, n, w)]


def barrier(b, after):
    out = []
    for k in range(4):
        out.append(b('s_barrier', after=after if k == 0 else [out[-1]], tag=f'bar{k}', prio=-2000))
    return out


def later_tiles(b, cfg, safe, mf, gate=()):
    c = b.ctx
    LEAD = cfg['lead']
    xrd = []
    for j in range(1, 3):
        xf = lambda s: f'%xf{j}{s}'
        for s in range(6):
            k = len(mf) + s - LEAD
            xrd.append(xread(b, f'xf{j}{s}', j, s, L_X, after=list(gate) + ([mf[min(k, len(mf) - 1)]] if k >= 0 else []), prio=-500))
        for jd in range(3):
            mf += proj_chain(b, f'ka{j}{jd}', WK, xf, jd, False)
        if safe:
            sumsq(b, f'ssk{j}', [f'ka{j}{jd}' for jd in range(3)], f's{S_EPSQ}')
        else:
            half_raw(b, j, 'k')
        for jd in range(3):
            mf += proj_chain(b, f'qa{j}{jd}', WQ, xf, jd, False)
        t = b.cur
        b.cur = t - 20
        if safe:
            sumsq(b, f'ssq{j}', [f'qa{j}{jd}' for jd in range(3)], f's{S_EPSQ}')
            qk_norm(b, j)
            b.cur = t
            qk_pack(b, j)
        else:
            half_raw(b, j, 'q')
            half_norm(b, j)
            b.cur = t
            half_scale(b, j)
            half_check(b, j)
        for jd in range(3):
            mf += proj_chain(b, f'va{j}{jd}', WV, xf, jd, True)
            t = b.cur
            b.cur = t - 30
            if j < 2:
                scale_pack(b, f'va{j}{jd}', None, lambda e: f'%v0{jd}.{e}', 2 * j)
            else:
                scale_pack(b, f'va{j}{jd}', None, lambda e: f'%v1{jd}.{e}', 0)
            b.cur = t
    return xrd


def advance(b, cfg, T1, barm, stores):
    b(f'v_xor_b32 v{V_XA0}, {TOG}, v{V_XA0}', prio=T1 + cfg['upd'][0])
    b(f'v_xor_b32 v{V_XA1}, {TOG}, v{V_XA1}', prio=T1 + cfg['upd'][0])
    b(f's_add_u32 s{S_T0}, s{S_IT}, 2')
    point(b, S_SRDX, S_PX, S_OFF, f's_cmp_lt_u32 s{S_T0}, s{S_N}')
    for i in range(5):
        if i == 4:
            b(f's_mov_b32 m0, s{S_M0B}')
        else:
            b(f's_add_u32 m0, s{S_M0A}, {4096 * i}')
        b(f'buffer_load_dwordx4 v{V_DMA + i}, s[{S_SRDX}:{S_SRDX + 3}], 0 offen{cfg["ld_flags"]} lds', after=[barm] + (stores if i == 4 else []), prio=-400)
    b(f's_xor_b32 s{S_M0A}, s{S_M0A}, {TOG}')
    b(f's_xor_b32 s{S_M0B}, s{S_M0B}, s{S_M0T}')
    for k in range(4, 0, -1):
        b(f's_mov_b32 s{S_OFF + k}, s{S_OFF + k - 1}')
    b(f's_add_u32 s{S_J}, s{S_J}, s{S_DJ}')
    b(f's_add_u32 s{S_OFF}, s{S_OFF}, s{S_DOFF}')
    b(f's_cmp_ge_u32 s{S_J}, 72')
    b(f's_cselect_b32 s{S_T0}, 72, 0')
    b(f's_cselect_b32 s{S_T1}, s{S_DCAR}, 0')
    b(f's_sub_u32 s{S_J}, s{S_J}, s{S_T0}')
    b(f's_add_u32 s{S_OFF}, s{S_OFF}, s{S_T1}')


def attention(b, cfg, safe, T1, mf, rec_after=(), wr_after=()):
    c = b.ctx
    e_at = mf[len(mf) - cfg['e_lead']]
    ea, eb, ec = c.new('ea', 4), c.new('eb', 4), c.new('ec', 4)
    for t, off in ((ea, 0), (eb, 16), (ec, 48)):
        b(f'ds_read_b128 {t}, v{V_QKE} offset:{off}', after=[e_at] + list(rec_after), prio=-300)
    tx = c.new('tx', 1)
    b(f'ds_read_b32 {tx}, v{V_VE} offset:192', after=[e_at] + list(rec_after), prio=-299)
    for jd in range(3):
        b(f'ds_read2_b32 %v1{jd}.2:3, v{V_VE} offset0:{16 * jd} offset1:{16 * jd}', after=[mf[len(mf) - cfg['ve_lead']]] + list(rec_after), prio=-298)
    b(f'v_add_u32 v{V_QKE}, {QKE_S}, v{V_QKE}', prio=T1 + cfg['upd'][1])
    b(f'v_add_u32 v{V_VE}, {VE_S}, v{V_VE}', prio=T1 + cfg['upd'][1])

    A = cfg['att']
    for j in range(3):
        b.cur = T1 + A['ex'][j]
        ex = c.new(f'ex{j}', 4)
        b(f'{H32} {ex}, {ea}, %qp{j}, {vr(V_BEX + 2 * j, 4)}')
        b(f'{H32} {ex}, {eb}, %kp{j}, {ex}')
        b(f'{H32} {ex}, {ec}, %tp{j}.2:5, {ex}')
        b(f'v_mov_b32_dpp {tx}, {ex}.1 quad_perm:[0,1,2,3] row_mask:{hex(1 << j)} bank_mask:0xf')
    b.cur = T1 + A['tx']
    if safe:
        mx, mt = c.new('mxx', 1), c.new('mtx', 1)
        b(f'v_mov_b32 {mx}, {tx}')
        for ctl in ('quad_perm:[1,0,3,2]', 'quad_perm:[2,3,0,1]', 'row_half_mirror', 'row_mirror'):
            b(f'v_max_f32_dpp {mx}, {mx}, {mx} {ctl} row_mask:0xf bank_mask:0xf')
        group_max(b, mx, mt)
        b(f'v_sub_f32 {tx}, {tx}, {mx}')
    b(f'v_exp_f32 {tx}, {tx}')
    b(f'{CVT} {tx}, {tx}, {tx}')
    pw = b(f'ds_write_b16 v{V_PW}, {tx}', prio=-200)

    o_wr = []
    marks = {}

    def s_tile(jq, after):
        if cfg['tail32']:
            for e in range(2):
                b(f'v_mov_b32 %tp{jq}.{e}, 0', after=[marks[jq - 1][0]] if jq else [e_at], prio=-50)
        for jk in range(3):
            s = c.new(f's{jq}{jk}', 4)
            b(f'{H32} {s}, %kp{jk}, %qp{jq}, {BIAS(jq, jk)}', after=[after[jk]] if after else [])
            if cfg['tail32']:
                b(f'{H32} {s}, %tp{jk}.2:5, %tp{jq}.0:3, {s}')
        for jk in range(0 if cfg['tail32'] else 3):
            b(f'{H16} %s{jq}{jk}, %tp{jk}.4:5, %tp{jq}.2:3, %s{jq}{jk}')

    def softmax(jq):
        p0 = c.new(f'p0{jq}', 4)
        regs = [f'%s{jq}{jk}.{r}' for jk in range(3) for r in range(4)] + [f'%ex{jq}.0']
        if safe:
            mx, mt = c.new(f'mx{jq}', 1), c.new(f'mt{jq}', 1)
            b(f'v_max3_f32 {mx}, {regs[12]}, {regs[0]}, {regs[1]}')
            for k in range(2, 12, 2):
                b(f'v_max3_f32 {mx}, {mx}, {regs[k]}, {regs[k + 1]}')
            group_max(b, mx, mt)
        mk = []
        for jk in range(3):
            for r in (0, 2):
                for q in (r, r + 1):
                    x = f'%s{jq}{jk}.{q}'
                    if safe:
                        b(f'v_sub_f32 {x}, {x}, {mx}')
                    mk.append(b(f'v_exp_f32 {x}, {x}'))
                d = f'{p0}.{2 * jk + r // 2}' if jk < 2 else f'v{V_P1 + r // 2}'
                b(f'{CVT} {d}, %s{jq}{jk}.{r}, %s{jq}{jk}.{r + 1}')
        x = f'%ex{jq}.0'
        if safe:
            b(f'v_sub_f32 {x}, {x}, {mx}')
        b(f'v_exp_f32 {x}, {x}')
        b(f'{CVT} v{V_P1 + 3}, {x}, 0')
        marks[jq] = mk

    def pv(jq):
        la = c.new(f'la{jq}', 4)
        p0, p1 = f'%p0{jq}', vr(V_P1, 4)
        b(f'{M32} {la}, {vr(V_ONES, 4)}, {p1}, 0')
        b(f'{M32} {la}, {vr(V_ONES, 4)}, {p0}, {la}')
        for jd in range(3):
            oa = c.new(f'oa{jq}{jd}', 4)
            b(f'{M32} {oa}, %v1{jd}, {p1}, 0')
            b(f'{M32} {oa}, %v0{jd}, {p0}, {oa}')

    def o_post(jq):
        la = f'%la{jq}.0'
        b(f'v_rcp_f32 {la}, {la}')
        op0, op1 = c.new(f'op0{jq}', 4), c.new(f'op1{jq}', 2)
        for jd in range(2):
            scale_pack(b, f'oa{jq}{jd}', la, lambda e: f'{op0}.{e}', 2 * jd)
        o_wr.extend(lds_write(b, V_OW, op0, 4, L_O + jq * 6144, cfg['ow'], wr_after))
        scale_pack(b, f'oa{jq}2', la, lambda e: f'{op1}.{e}', 0)
        o_wr.extend(lds_write(b, V_OT, op1, 2, L_O + jq * 6144 + 4096, cfg['ow'], wr_after))

    def extra_pv(after):
        pa0, pa1 = c.new('pa0', 4), c.new('pa1', 4)
        b(f'ds_read_b128 {pa0}, v{V_PR}', after=[pw] + after, prio=-250)
        b(f'ds_read_b128 {pa1}, v{V_PR} offset:64', after=[pw] + after, prio=-250)
        lx = c.new('lx', 4)
        b(f'{M32} {lx}, {pa0}, {vr(V_ONES, 4)}, 0')
        b(f'{M32} {lx}, {pa1}, {vr(V_ONES, 4)}, {lx}')
        for jd in range(3):
            ox = c.new(f'ox{jd}', 4)
            b(f'{M32} {ox}, {pa0}, %v0{jd}, 0')
            b(f'{M32} {ox}, {pa1}, %v1{jd}, {ox}')
        b.cur = T1 + A['xo']
        b(f'v_rcp_f32 {lx}.0, {lx}.0')
        b(f'v_mul_f32 %ox0.0, %ox0.0, {lx}.0')
        for jd in (1, 2):
            b(f'v_mul_f32_dpp %ox0.0, %ox{jd}.0, {lx}.0 quad_perm:[0,1,2,3] row_mask:{hex(1 << jd)} bank_mask:0xf')
        b(f'{CVT} %ox0.0, %ox0.0, %ox0.0')
        o_wr.append(b(f'ds_write_b16 v{V_OE}, %ox0.0', prio=-100, after=wr_after))
        b(f'v_add_u32 v{V_OE}, 16, v{V_OE}', prio=T1 + cfg['upd'][1])

    b.cur = T1 + A['s0']
    s_tile(0, None)
    for jq in range(3):
        b.cur = T1 + A['sm'][jq]
        softmax(jq)
        if jq < 2:
            b.cur = T1 + A['s'][jq]
            d = A['s_after'][jq]
            s_tile(jq + 1, [marks[jq][min(11, d + A['s_step'] * jk)] for jk in range(3)])
        b.cur = T1 + A['pv'][jq]
        pv(jq)
        b.cur = T1 + A['op'][jq]
        o_post(jq)
        if jq == A['x_after'] // 12:
            b.cur = T1 + A['x']
            extra_pv([marks[jq][A['x_after'] % 12]])

    return o_wr, marks


def build_loop(ctx, cfg, safe, label):
    b = Block(ctx, 'loop', lds_lat=cfg['lds_lat'])
    b.gap_st, b.gap_dma, b.slack = cfg['gap_st'], cfg['gap_dma'], cfg['slack']
    b.cyclic, b.limit = True, cfg['limit']
    c = ctx
    LEAD = cfg['lead']
    m0, v0, need0 = tile0(c, safe)
    for j in range(3):
        for jd in range(3):
            c.new(f'y{j}{jd}', 4)

    b.cur = 0
    point(b, S_SRDO, S_PO, S_OFF + 4, f's_cmp_ge_u32 s{S_IT}, 2')
    st0 = c.new('st0', 4)
    st1 = c.new('st1', 4)
    b(f'ds_read_b128 {st0}, v{V_OR} offset:{L_STAT}', prio=-600)
    stat_rd = b(f'ds_read_b128 {st1}, v{V_OR} offset:{L_STAT + 1024}', prio=-600)
    lnr = c.new('lnr', 4)
    b(f'{M32} {lnr}, {vr(V_SEL, 4)}, {st0}, 0', prio=-900)
    b(f'{M32} {lnr}, {vr(V_SEL, 4)}, {st1}, {lnr}', prio=-900)
    b.cur = cfg['ln_prio'][0]
    rs = [ln_scale(b, lnr, j, f'rs{j}') for j in range(3)]
    stores = []
    for j in range(3):
        b.cur = cfg['ln_prio'][j]
        stores += ln_finish(b, lambda jc: f'y{j}{jc}', rs[j], f'v{V_ST4 + j}', f'v{V_ST2 + j}', '0', f'yp{j}', cfg['st_flags'])

    mf = []
    for jd in range(3):
        c.new(f'v0{jd}', 4)
        c.new(f'v1{jd}', 4)
    b.cur = cfg['hm']
    for text, kw in m0[cfg['hm']:]:
        mf.append(b(text, **kw))
        b.cur += 1
    for k, (text, kw) in enumerate(v0):
        if k >= cfg['cut']:
            b(text, **dict(dict(prio=16 if k < 29 else 36), **kw))
    b.cur = 20
    for jd in range(3):
        scale_pack(b, f'va0{jd}', None, lambda e: f'%v0{jd}.{e}', 0)
    b.cur = 54
    xrd = later_tiles(b, cfg, safe, mf)
    T1 = b.cur

    wv = b('s_waitcnt vmcnt(0)', after=[mf[len(mf) - max(1, cfg['m_at'])]], tag='vmw')
    barm = barrier(b, [wv] + xrd)[-1]
    advance(b, cfg, T1, barm, stores)
    o_wr, _ = attention(b, cfg, safe, T1, mf)

    out_mf = []
    ord_ = []
    b.cur = T1 + 100
    OL = cfg['o_lead']
    for j in range(3):
        for p in range(6):
            t = c.new(f'of{j}{p}', 4)
            aft = out_mf[min(len(out_mf) + p - OL, len(out_mf) - 1)] if j else mf[min(len(mf) - cfg['o_first'] + p, len(mf) - 1)]
            ord_.append(b(f'ds_read_b128 {t}, v{V_OR} offset:{L_O + j * 6144 + p * 1024}', after=[aft], prio=-450))
        for jc in range(3):
            out_mf += proj_chain(b, f'y{j}{jc}', WO, lambda p: f'%of{j}{p}', jc, False, step=0.01)
        t = b.cur
        b.cur = T1 + cfg['ss_prio'][j]
        sumsq(b, f'ssy{j}', [f'y{j}{jc}' for jc in range(3)], f's{S_EPSY}')
        b.cur = t
    if cfg['m_at'] <= 0:
        wv.after.append(out_mf[-cfg['m_at']])
    b.cur = T1 + cfg['ss_prio'][2]
    sp = c.new('sp', 2)
    b(f'{CVT} {sp}.0, %ssy0, %ssy1')
    b(f'{CVT} {sp}.1, %ssy2, %ssy2')
    o_wr.extend(lds_write(b, V_OT, sp, 2, L_STAT, cfg['ow']))
    for r in (V_OR, V_OW, V_OT):
        b(f'v_xor_b32 v{r}, {TOG}, v{r}', prio=T1 + cfg['upd'][2])

    b.cur = T1 + 150
    H = cfg['h_lead']
    rd, ch = head_part(b, cfg, safe, after=[out_mf[min(len(out_mf) - 1, len(out_mf) - H + s)] for s in range(6)])
    for r in rd:
        r.after.append(barm)
    b(f's_add_u32 s{S_IT}, s{S_IT}, 1')
    b(f's_cmp_lt_u32 s{S_IT}, s{S_N}')
    barrier(b, o_wr + ord_ + [stat_rd])
    ch[-1].after += [i for i in b.ins if i is not ch[-1]]
    b(f's_cbranch_scc1 {label}', after=list(b.ins), prio=2e6)
    b.entry = [(ch[-1 - k], 1 + 2 * k) for k in range(4)]
    return b


def place_loop(cfg, safe, pins, tries=300):
    ctx = Ctx()
    b = build_loop(ctx, cfg, safe, 'L_LOOP')
    seq = b.schedule()
    assert not b.open_reads
    _, entry = occupancy(ctx, seq, True)
    names = sorted({k[1] for k in entry})
    if pins:
        taken = {base + e for n, (size, (bank, base)) in pins.items() for e in range(size)}
        for n in names:
            if n in pins:
                ctx.phys[n] = pins[n][1]
        free = [r for r in POOL if r not in taken]
        for n in sorted((n for n in names if n not in pins), key=lambda n: -ctx.size[n]):
            sz = ctx.size[n]
            base = next(r for r in free if (sz == 1 or (r + sz - POOL[0]) % 4 == 0) and all(r + e in free for e in range(sz)))
            ctx.phys[n] = ('v', base)
            free = [r for r in free if not base <= r < base + sz]
    mp, _, entry = allocate(ctx, seq, POOL, True, tries=tries)
    return ctx, seq, b, mp, entry


CFG = dict(limit=0, tail32=0, ow=0, lds_lat=112, slack=0, gap_st=272, gap_dma=80, lead=10, hm=42, cut=26, head_prio=60, ln_prio=[40, 80, 130],
           m_at=40, e_lead=30, ve_lead=12, st_flags='', ld_flags=' nt', o_lead=10, o_first=10, h_lead=12,
           ss_prio=[25, 45, 62], upd=[50, 200, 300],
           att=dict(ex=[-10, -10, -10], tx=0, s0=-5, sm=[1, 21, 41], s=[2, 22], pv=[3, 23, 43], op=[20, 40, 60],
                    s_after=[3, 3], s_step=2, x_after=7, x=10, xo=10))


def report(cfg, safe, noise=None, dump=None):
    from collections import Counter
    ctx = Ctx()
    b = build_loop(ctx, cfg, safe, 'L')
    out = b.schedule(noise=noise)
    busy = sum((4 if '16x16x16' in i.op else 8) if i.kind == 'mfma' else i.dur for i in out if i.kind in ('mfma', 'valu') + MEM)
    print('safe', safe, 'cycles', b.cycles, 'stall', b.stall, 'chain', chain_count(out), 'busy', busy, dict(Counter(i.kind for i in out)))
    press = None
    try:
        mp, press, entry = allocate(ctx, out, POOL, True)
        print(' max pressure', mp, 'of', len(POOL))
    except RuntimeError as e:
        print(e)
    if dump:
        with open(dump, 'w') as f:
            for p, i in enumerate(out):
                f.write(f'{i.time:5d} {press[2*p] if press else 0:3d} {i.text} {i.tag}\n')


if __name__ == '__main__':
    report(CFG, False, dump='sched.txt')
    report(CFG, True)
```

```python
from ir import *

M32 = 'v_mfma_f32_16x16x32_bf16'
M16 = 'v_mfma_f32_16x16x16_bf16'
CVT = 'v_cvt_pk_bf16_f32'
H32 = 'v_mfma_f32_16x16x32_f16'
H16 = 'v_mfma_f32_16x16x16_f16'
CVH = 'v_cvt_pk_f16_f32'

TOG = 0x10000
L_O = 0x0000
L_STAT = 0x4800
L_X = 0x5000
NSLOT = 24
VE_S = 272
QKE_S = 336
L_VE = 0x9800
VE_H = NSLOT * VE_S
L_PE = L_VE + 4 * VE_H
L_QKE = 0x19800
QKE_H = NSLOT * QKE_S
L_OE = L_QKE + 4 * QKE_H
L_XE = L_OE + 12288
L_TAB = L_XE + 8192
L_DUM = L_TAB + 3072
L_OED = L_DUM + 1280
L_MEAN = L_OED + 512
L_END = L_MEAN + 768
assert L_PE + 512 <= 0x10000 and L_END <= 163840 and L_XE + 12288 <= 163840
LDS_BYTES = 163840

_next = [0]


def _v(n, al=1):
    while _next[0] % al:
        _next[0] += 1
    b = _next[0]
    _next[0] += n
    return b


V_LANE = _v(1)
V_XA0 = V_LANE
V_XA1 = _v(1)
V_OR = _v(1)
V_OW = _v(1)
V_OT = _v(1)
V_QKE = _v(1)
V_VE = _v(1)
V_OE = _v(1)
V_PW = _v(1)
V_PR = _v(1)
V_DMA = _v(5)
V_ST4 = _v(3)
V_ST2 = _v(3)
V_FREE = _v(1)
V_BEX = _v(6, 2)
V_ONES = _v(4, 2)
V_SEL = _v(4, 2)
V_P1 = _v(4, 2)
V_SELH = _v(4, 2)
V_MN = _v(1)
V_MX = _v(1)
V_BIAS = _v(36, 2)
V_WO = _v(32, 2)
POOL0 = _v(0, 2)
POOL = list(range(POOL0, 256))


def vr(b, n=1):
    return f'v{b}' if n == 1 else f'v[{b}:{b + n - 1}]'


def WQ(jd, s): return f'a[{(jd * 6 + s) * 4}:{(jd * 6 + s) * 4 + 3}]'
def WK(jd, s): return f'a[{72 + (jd * 6 + s) * 4}:{72 + (jd * 6 + s) * 4 + 3}]'
def WV(jd, s): return f'a[{144 + (jd * 6 + s) * 4}:{144 + (jd * 6 + s) * 4 + 3}]'


def wo_reg(jc, p):
    f = jc * 6 + p
    return ('a', 216 + 4 * f) if f < 10 else ('v', V_WO + 4 * (f - 10))


def WO(jc, p):
    bank, b = wo_reg(jc, p)
    return f'{bank}[{b}:{b + 3}]'


def BIAS(jq, jk): return vr(V_BIAS + (jq * 3 + jk) * 4, 4)


S_SRDX = 8
S_SRDO = 12
S_H = 16
S_N = 17
S_IT = 18
S_J = 19
S_DJ = 20
S_DOFF = 21
S_DCAR = 22
S_OFF = 23
S_M0A = 28
S_M0B = 29
S_M0T = 30
S_C = 31
S_EPSQ = 32
S_EPSY = 33
S_T0 = 34
S_T1 = 35
S_NB = 36
S_J0 = 38
S_FORCE = 44
S_PX = 40
S_PO = 42
S_BEE = 39
S_TOK48 = 7
NBYTES = 100270464


def xread(b, name, j, s, base, addr=None, **kw):
    t = b.ctx.new(name, 4)
    a0, a1 = addr or (f'v{V_XA0}', f'v{V_XA1}')
    return b(f'ds_read_b128 {t}, {a1 if s & 1 else a0} offset:{base + j * 6144 + (s >> 1) * 128}', **kw)


def proj_chain(b, acc, w, xf, jd, x_is_a, step=1.0):
    t = b.ctx.new(acc, 4)
    out = []
    for s in range(6):
        a_, b_ = (xf(s), w(jd, s)) if x_is_a else (w(jd, s), xf(s))
        out.append(b(f'{M32} {t}, {a_}, {b_}, {0 if s == 0 else t}'))
        b.cur += step
    return out


def sumsq(b, ss, accs, init):
    t = b.ctx.new(ss, 1)
    first = True
    for a in accs:
        for r in range(4):
            if first:
                if init is None:
                    b(f'v_mul_f32 {t}, %{a}.{r}, %{a}.{r}')
                else:
                    b(f'v_fma_f32 {t}, %{a}.{r}, %{a}.{r}, {init}')
                first = False
            else:
                b(f'v_fmac_f32 {t}, %{a}.{r}, %{a}.{r}')


def scale_pack(b, acc, scale, dst, off, cvt=CVT):
    last = None
    for r in (0, 2):
        if scale is not None:
            b(f'v_mul_f32 %{acc}.{r}, {scale}, %{acc}.{r}')
            b(f'v_mul_f32 %{acc}.{r + 1}, {scale}, %{acc}.{r + 1}')
        d = dst(off + r // 2)
        last = b(f'{cvt} {d}, %{acc}.{r}, %{acc}.{r + 1}')
    return last


def qk_norm(b, j, sfx=''):
    c = b.ctx
    nr = c.new(f'nr{j}{sfx}', 4)
    b(f'{CVT} v{V_P1}, %ssq{j}{sfx}, %ssk{j}{sfx}')
    m = b(f'{M32} {nr}, {vr(V_SEL, 4)}, {vr(V_P1, 4)}, 0', prio=-1000)
    b(f'v_rsq_f32 {nr}.1, {nr}.1')
    b(f'v_rsq_f32 {nr}.0, {nr}.0')
    b(f'v_mul_f32 {nr}.0, s{S_C}, {nr}.0')
    return m


def qk_dst(c, j, sfx, nm, jd):
    for t in ('qp', 'kp'):
        c.new(f'{t}{j}{sfx}', 4)
    c.new(f'tp{j}{sfx}', 6)
    if jd < 2:
        return f'%{nm}p{j}{sfx}', 2 * jd
    return f'%tp{j}{sfx}', 4 if nm == 'k' else 2


def qk_pack(b, j, sfx=''):
    for nm, r in (('k', 1), ('q', 0)):
        for jd in range(3):
            t, off = qk_dst(b.ctx, j, sfx, nm, jd)
            scale_pack(b, f'{nm}a{j}{jd}{sfx}', f'%nr{j}{sfx}.{r}', lambda e: f'{t}.{e}', off, CVH)


def half_raw(b, j, nm):
    nb = b.ctx.new(f'nb{j}', 4)
    for jd in range(3):
        t, off = qk_dst(b.ctx, j, '', nm, jd)
        for k in range(2):
            x, ss = f'{t}.{off + k}', f'{nb}.{2 * k + (nm == "k")}'
            b(f'{CVH} {x}, %{nm}a{j}{jd}.{2 * k}, %{nm}a{j}{jd}.{2 * k + 1}')
            b(f'v_pk_fma_f16 {ss}, {x}, {x}, {ss}' if jd else f'v_pk_mul_f16 {ss}, {x}, {x}')


def half_norm(b, j):
    nr = b.ctx.new(f'nr{j}', 4)
    b(f'{H32} {nr}, {vr(V_SELH, 4)}, %nb{j}, 0', prio=-1000)
    b(f'v_rsq_f32 {nr}.2, {nr}.0')
    b(f'v_rsq_f32 {nr}.3, {nr}.1')
    b(f'v_mul_f32 {nr}.2, s{S_C}, {nr}.2')
    b(f'{CVH} {nr}.2, {nr}.2, {nr}.3')


def half_scale(b, j):
    for nm, sel in (('k', 1), ('q', 0)):
        for jd in range(3):
            t, off = qk_dst(b.ctx, j, '', nm, jd)
            for k in range(2):
                b(f'v_pk_mul_f16 {t}.{off + k}, {t}.{off + k}, %nr{j}.2 op_sel:[0,{sel}] op_sel_hi:[1,{sel}]')


def half_check(b, j):
    b(f'v_min3_u32 v{V_MN}, v{V_MN}, %nr{j}.0, %nr{j}.1')
    b(f'v_max3_u32 v{V_MX}, v{V_MX}, %nr{j}.0, %nr{j}.1')


def group_max(b, m, tmp):
    for op in ('v_permlane32_swap_b32', 'v_permlane16_swap_b32'):
        b(f'v_mov_b32 {tmp}, {m}')
        b(f'{op} {m}, {tmp}')
        b(f'v_max_f32 {m}, {m}, {tmp}')


def ln_scale(b, red, r, name):
    t = b.ctx.new(name, 1)
    b(f'v_mul_f32 {t}, 0x3baaaaab, {red}.{r}')
    b(f'v_rsq_f32 {t}, {t}')
    return t


def ln_finish(b, y, rs, va4, va2, soff, name, flags=''):
    c = b.ctx
    p0 = c.new(name + 'a', 4)
    p1 = c.new(name + 'b', 2)
    for jc in range(2):
        scale_pack(b, y(jc), rs, lambda e: f'{p0}.{e}', 2 * jc)
    s0 = b(f'buffer_store_dwordx4 {p0}, {va4}, s[{S_SRDO}:{S_SRDO + 3}], {soff} offen{flags}')
    scale_pack(b, y(2), rs, lambda e: f'{p1}.{e}', 0)
    s1 = b(f'buffer_store_dwordx2 {p1}, {va2}, s[{S_SRDO}:{S_SRDO + 3}], {soff} offen{flags}')
    return s0, s1


def point(b, srd, ptr, off, cond=None):
    b(f's_add_u32 s{srd}, s{ptr}, s{off}')
    b(f's_addc_u32 s{srd + 1}, s{ptr + 1}, 0')
    b(f's_sub_u32 s{srd + 2}, s{S_NB}, s{off}')
    if cond:
        b(cond)
        b(f's_cselect_b32 s{srd + 2}, s{srd + 2}, 0')
```

```python
import copy, json, random, sys, time
from multiprocessing import Pool
from loop import *

RANGES = {
    'lead': (7, 14), 'hm': (30, 50), 'cut': (4, 41), 'head_prio': (-120, 200), 'ln_prio': (0, 200), 'm_at': (-20, 47),
    'e_lead': (4, 45), 've_lead': (1, 30), 'o_lead': (6, 16), 'o_first': (1, 24), 'h_lead': (-5, 18), 'ss_prio': (0, 120),
    'upd': (-50, 320),
    'att.ex': (-40, 30), 'att.tx': (-20, 60), 'att.s0': (-30, 10), 'att.sm': (-10, 70), 'att.s': (-10, 60), 'att.pv': (-10, 70),
    'att.op': (0, 90), 'att.s_after': (0, 11), 'att.s_step': (0, 4), 'att.x_after': (0, 35), 'att.x': (-10, 160), 'att.xo': (-10, 90),
}


def evaluate(cfg, safe, limit):
    try:
        ctx = Ctx()
        b = build_loop(ctx, cfg, safe, 'L')
        out = b.schedule()
    except AssertionError:
        return 1e9, None
    if b.open_reads:
        return 1e9, None
    occ, _ = occupancy(ctx, out, True)
    mp = max(pressure(occ, 2 * len(out)))
    ch = chain_count(out)
    first_vm = min(i.time for i in out if i.kind in ('vst', 'dma'))
    pen = max(0, b.vm_exit - first_vm)
    return b.cycles + 20 * max(0, mp - limit) - 0.6 * ch + 0.2 * mp + pen, (b.cycles, mp, ch)


def mutate(cfg, rng):
    c = copy.deepcopy(cfg)
    for _ in range(rng.choice((1, 1, 2, 3))):
        k = rng.choice(list(RANGES))
        lo, hi = RANGES[k]
        d, key = (c['att'], k[4:]) if k.startswith('att.') else (c, k)
        step = lambda v: min(hi, max(lo, v + rng.choice((-1, 1)) * rng.choice((1, 1, 2, 3, 5, 10, 20)))) if rng.random() < 0.8 else rng.randint(lo, hi)
        if isinstance(d[key], list):
            i = rng.randrange(len(d[key]))
            d[key][i] = step(d[key][i])
        else:
            d[key] = step(d[key])
    return c


def walk(args):
    cfg, safe, limit, seed, secs = args
    rng = random.Random(seed)
    best = cur = cfg
    bs, bi = evaluate(cfg, safe, limit)
    cs = bs
    t0 = time.time()
    while time.time() - t0 < secs:
        c = mutate(cur, rng)
        s, info = evaluate(c, safe, limit)
        if s <= cs + (3 if rng.random() < 0.2 else 0):
            cur, cs = c, s
            if s < bs:
                best, bs, bi = c, s, info
    return bs, bi, best


if __name__ == '__main__':
    safe = sys.argv[1] == 'safe'
    limit, secs, rounds = int(sys.argv[2]), float(sys.argv[3]), int(sys.argv[4])
    path = f'cfg_{"safe" if safe else "fast"}.json'
    cfg = dict(CFG, **json.load(open(path)))
    if len(sys.argv) > 5:
        cfg.update(eval(sys.argv[5]))
        path = sys.argv[6]
    for k in ('lds_lat', 'slack', 'gap_st', 'gap_dma', 'st_flags', 'ld_flags'):
        cfg[k] = CFG[k]
    pins = {}
    if safe:
        fast = dict(CFG, **json.load(open('cfg_fast.json')))
        cfg['hm'], cfg['cut'] = fast['hm'], min(24, cfg['cut'], 4 * ((fast['hm'] - 1) // 6))
        del RANGES['hm']
        cfg['limit'] = limit - 6
        ctx, _, _, _, entry = place_loop(fast, False, {})
        pins = {k[1]: (ctx.size[k[1]], ctx.phys[k[1]]) for k in entry}
    with Pool(8) as p:
        for r in range(rounds):
            res = sorted(p.map(walk, [(cfg, safe, limit, random.random(), secs) for _ in range(8)]), key=lambda x: x[0])
            print([x[1] for x in res], flush=True)
            for s, info, c in res:
                try:
                    place_loop(c, safe, pins, tries=150)
                except (RuntimeError, AssertionError):
                    continue
                cfg = c
                json.dump(c, open(path, 'w'))
                print(' kept', info)
                break
```

```python
import bisect
import random
import re

TRANS = ('v_exp_', 'v_log_', 'v_rcp_', 'v_rsq_', 'v_sqrt_', 'v_sin_', 'v_cos_')
SCC_DEF = ('s_add_', 's_sub_', 's_and_', 's_or_', 's_xor_', 's_lshl_', 's_lshr_', 's_ashr_', 's_cmp_', 's_addc',
           's_subb', 's_min_', 's_max_', 's_andn2', 's_not_', 's_bfe_', 's_addk', 's_cmpk', 's_bitcmp')
SCC_USE = ('s_cselect', 's_cbranch_scc', 's_addc', 's_subb')

_REG = re.compile(r'^-?(?:abs\()?(%[A-Za-z_][A-Za-z0-9_]*(?:\.\d+(?::\d+)?)?|[vas]\d+|[vas]\[\d+:\d+\]|vcc|exec|exec_lo|exec_hi|m0|vcc_lo|vcc_hi)\)?$')
_SYM = re.compile(r'%([A-Za-z_][A-Za-z0-9_]*)(?:\.(\d+)(?::(\d+))?)?')


class Ctx:
    def __init__(self):
        self.size = {}
        self.phys = {}

    def new(self, name, n=1, phys=None):
        assert name not in self.size or self.size[name] == n, name
        self.size[name] = n
        if phys is not None:
            self.phys[name] = phys
        return '%' + name

    def keys(self, tok):
        m = _REG.match(tok)
        if not m:
            return []
        t = m.group(1)
        if t[0] == '%':
            m = _SYM.match(t)
            name = m.group(1)
            n = self.size[name]
            if m.group(2) is None:
                lo, hi = 0, n - 1
            else:
                lo = int(m.group(2))
                hi = int(m.group(3)) if m.group(3) else lo
            assert hi < n, tok
            return [('%', name, i) for i in range(lo, hi + 1)]
        if t in ('vcc', 'vcc_lo', 'vcc_hi'):
            return ['vcc']
        if t.startswith('exec'):
            return ['exec']
        if t == 'm0':
            return ['m0']
        if '[' in t:
            lo, hi = map(int, t[2:-1].split(':'))
            return [(t[0], i) for i in range(lo, hi + 1)]
        return [(t[0], int(t[1:]))]

    def subst(self, text):
        def rep(m):
            name = m.group(1)
            bank, base = self.phys[name]
            if m.group(2) is None:
                lo, hi = 0, self.size[name] - 1
            else:
                lo = int(m.group(2))
                hi = int(m.group(3)) if m.group(3) else lo
            if lo == hi:
                return f'{bank}{base + lo}'
            assert (base + lo) % 2 == 0, (text, name, base, lo)
            return f'{bank}[{base + lo}:{base + hi}]'
        return _SYM.sub(rep, text)


class Ins:
    def __init__(self, ctx, text, prio=None, after=(), full=False, grp=None, lat=None, tag=''):
        self.text = text
        self.prio = prio
        self.after = list(after)
        self.grp = grp
        self.lat = lat
        self.gap = None
        self.tag = tag
        self.defs, self.uses = [], []
        self.A = self.B = self.C = ()
        self.data = ()
        self.dpp_src = ()
        self.parse(ctx, full)

    def parse(self, ctx, full):
        s = self.text.split(';')[0].strip()
        op, _, rest = s.partition(' ')
        self.op = op
        parts = [p.strip() for p in rest.split(',')] if rest.strip() else []
        mods = ''
        ops = []
        for i, p in enumerate(parts):
            if ' ' in p:
                head, _, tail = p.partition(' ')
                ops.append(head)
                mods = tail + ' ' + ','.join(parts[i + 1:])
                break
            ops.append(p)
        K = [ctx.keys(o) for o in ops]
        flat = lambda L: [k for x in L for k in x]
        self.dur = 4
        if op.endswith(':'):
            self.kind = 'label'
        elif op.startswith('v_mfma'):
            self.kind = 'mfma'
            self.defs = K[0]
            self.A, self.B, self.C = K[1], K[2], K[3]
            self.uses = flat(K[1:])
        elif op.startswith('v_'):
            self.kind = 'valu'
            self.trans = op.startswith(TRANS)
            if self.trans or 'permlane' in op or op.startswith('v_mul_lo') or op.startswith('v_mul_hi'):
                self.dur = 8
            if 'permlane' in op:
                self.defs = flat(K)
                self.uses = flat(K)
                self.dpp_src = self.uses
            else:
                self.defs = K[0]
                self.uses = flat(K[1:])
                if op.startswith('v_fmac') or op.startswith('v_writelane'):
                    self.uses += K[0]
                if op.endswith('_dpp'):
                    if 'row_mask:0xf' not in mods and not full:
                        self.uses += K[0]
                    self.dpp_src = list(self.uses)
        elif op.startswith('ds_read') or op.startswith(('ds_bpermute', 'ds_permute')):
            self.kind = 'dsr'
            self.defs = K[0]
            self.uses = flat(K[1:])
        elif op.startswith('ds_write'):
            self.kind = 'dsw'
            self.uses = flat(K)
            self.dur = 4 + 4 * (len(self.uses) - 1)
        elif op.startswith('buffer_load'):
            if re.search(r'\blds\b', mods):
                self.kind = 'dma'
                self.uses = flat(K) + ['m0']
            else:
                self.kind = 'vld'
                self.defs = K[0]
                self.uses = flat(K[1:])
        elif op.startswith('buffer_atomic'):
            self.kind = 'vld'
            self.defs = K[0]
            self.uses = flat(K)
        elif op.startswith('global_load'):
            self.kind = 'vld'
            self.defs = K[0]
            self.uses = flat(K[1:])
        elif op.startswith('buffer_store'):
            self.kind = 'vst'
            self.uses = flat(K)
            self.data = K[0]
        elif op.startswith('s_load') or op.startswith('s_memtime') or op.startswith('s_memrealtime'):
            self.kind = 'smem'
            self.defs = K[0]
            self.uses = flat(K[1:])
        elif op == 's_waitcnt':
            self.kind = 'wait'
        elif op == 's_barrier':
            self.kind = 'bar'
        elif op == 's_nop':
            self.kind = 'nop'
            self.dur = 4 * (int(ops[0]) + 1)
        elif op.startswith('s_'):
            self.kind = 'salu'
            if op.startswith(('s_cmp', 's_cbranch', 's_branch', 's_endpgm', 's_setprio', 's_bitcmp')):
                self.uses = flat(K)
            else:
                self.defs = K[0]
                self.uses = flat(K[1:])
            if op.startswith(SCC_DEF):
                self.defs = self.defs + ['scc']
            if op.startswith(SCC_USE):
                self.uses = self.uses + ['scc']
        else:
            raise ValueError(self.text)
        if op.startswith('buffer_') and ops[-1].startswith('s'):
            self.dur = 8
        if self.kind in ('valu', 'mfma', 'dsr', 'dsw', 'dma', 'vld', 'vst'):
            self.uses = self.uses + ['exec']

    @property
    def states(self):
        if self.kind == 'label':
            return 0
        if self.kind == 'nop':
            return self.dur // 4
        return 1


MEM = ('dsr', 'dsw', 'dma', 'vld', 'vst')


def is_vreg(k):
    return isinstance(k, tuple) and k[0] in ('%', 'v', 'a')


def is_sreg(k):
    return k == 'vcc' or (isinstance(k, tuple) and k[0] == 's')


def need_states(p, c):
    n = 0
    pd, cu, cd = set(p.defs), set(c.uses), set(c.defs)
    raw = pd & cu
    if p.kind == 'mfma':
        if c.kind == 'mfma':
            if pd & (set(c.A) | set(c.B)):
                n = max(n, 8)
            if pd & set(c.C) and (list(p.defs) != list(c.C) or p.op != c.op):
                n = max(n, 6)
        elif (raw or pd & cd) and c.kind in ('valu',) + MEM:
            n = max(n, 8)
        if c.kind == 'valu' and set(p.C) & cd:
            n = max(n, 3)
    elif p.kind == 'valu':
        vraw = [k for k in raw if is_vreg(k)]
        sraw = [k for k in raw if is_sreg(k)]
        if c.kind == 'mfma' and vraw:
            n = max(n, 2)
        if p.op.startswith('v_dot') and (vraw or pd & cd) and c.kind in ('valu', 'mfma') + MEM:
            n = max(n, 3)
        if c.kind == 'valu':
            if vraw and p.trans and not c.trans:
                n = max(n, 1)
            if pd & set(c.dpp_src):
                n = max(n, 2)
            if vraw and c.op.startswith(('v_readfirstlane', 'v_readlane')):
                n = max(n, 1)
            if sraw:
                n = max(n, 4 if c.op.startswith(('v_readlane', 'v_writelane')) else 2)
        if c.kind in MEM and vraw and p.trans:
            n = max(n, 1)
        if c.kind in ('dma', 'vld', 'vst') and sraw:
            n = max(n, 5)
        if c.kind in ('salu', 'smem') and sraw:
            n = max(n, 2)
    elif p.kind == 'salu':
        if 'm0' in pd and c.kind == 'dma':
            n = max(n, 1)
    elif p.kind == 'vst':
        if len(p.data) >= 3 and set(p.data) & cd:
            n = max(n, 2)
    if p.kind in ('dsr', 'vld') and c.kind == 'valu' and pd & set(c.dpp_src):
        n = max(n, 2)
    return n


def pad_hazards(ctx, seq, pre=()):
    out = list(pre)
    base = len(out)
    added = 0
    for c in seq:
        if c.kind != 'label':
            gap = 0
            need = 0
            for p in reversed(out):
                if gap >= 9:
                    break
                need = max(need, need_states(p, c) - gap)
                gap += p.states
            if need > 0:
                out.append(Ins(ctx, f's_nop {need - 1}', tag='pad'))
                added += need
        out.append(c)
    return out[base:], added


class Timer:
    QUEUE = 28
    bar_cost = 0
    vm_cost = 0

    def __init__(self):
        self.t = 0
        self.vec = 0
        self.pipe = 0
        self.valu_end = -100
        self.mblock = 0
        self.dsblock = 0
        self.ldsq = 0
        self.salu_at = -100
        self.sblock = 0
        self.mop = 'v_mfma_f32_16x16x32_bf16'

    def when(self, i):
        k = i.kind
        if k == 'mfma':
            return max(self.t, self.vec, self.pipe + (4 if i.op[:19] != self.mop[:19] else 0), self.mblock)
        if k == 'valu':
            return max(self.t, self.vec)
        if k in ('dsr', 'dsw'):
            return max(self.t, self.vec, self.valu_end + 8, self.dsblock, self.ldsq - self.QUEUE)
        if k in MEM:
            return max(self.t, self.vec, self.valu_end + 8, self.salu_at + 8)
        if k == 'salu':
            return max(self.t, self.sblock)
        return self.t

    def issue(self, i):
        w = self.when(i)
        k = i.kind
        if k == 'label':
            return w
        if k == 'mfma':
            self.t, self.vec, self.pipe = w + 4, w + (4 if '16x16x16' in i.op else 8), w + 16
            self.mop = i.op
        elif k == 'valu':
            self.t = self.vec = self.valu_end = w + i.dur
            if any(is_sreg(d) for d in i.defs):
                self.sblock = w + 20
        elif k in MEM:
            self.t = self.vec = w + i.dur + (self.vm_cost if k in ('vst', 'dma') else 0)
            if k == 'vst':
                self.mblock = w + 4 + 4 * len(i.data)
            if k == 'dsr':
                self.ldsq = max(self.ldsq, w) + (16 if 'b128' in i.op or 'read2' in i.op else 8)
            if k == 'dsw':
                self.dsblock = w + {8: 32 if 'b32' in i.op else 20, 12: 32, 16: 44, 20: 56}[i.dur]
        else:
            self.t = w + i.dur + (self.bar_cost if k == 'bar' else 0)
            if k == 'salu':
                self.salu_at = w
        return w


class Block:
    def __init__(self, ctx, name, lds_lat=128):
        self.ctx = ctx
        self.name = name
        self.ins = []
        self.lds_lat = lds_lat
        self.cur = 0.0

    def __call__(self, text, **kw):
        i = Ins(self.ctx, text, **kw)
        if i.prio is None:
            i.prio = self.cur
        i.seq = len(self.ins)
        self.ins.append(i)
        return i

    def build_deps(self):
        lastdef, users = {}, {}
        n = len(self.ins)
        self.pred = [dict() for _ in range(n)]
        self.scc_users = {}
        if self.free_scc:
            cur = None
            for c in self.ins:
                if 'scc' in c.uses:
                    self.scc_users.setdefault(cur.seq, []).append(c)
                    c.uses = [k for k in c.uses if k != 'scc']
                    c.after.append(cur)
                c.sccdef = 'scc' in c.defs
                if c.sccdef:
                    cur = c
                    c.defs = [k for k in c.defs if k != 'scc']
        for c in self.ins:
            P = self.pred[c.seq]
            for k in c.uses:
                if k in lastdef:
                    P[lastdef[k].seq] = 'raw'
            for k in c.defs:
                if k in lastdef:
                    P.setdefault(lastdef[k].seq, 'waw')
                for u in users.get(k, ()):
                    if u is not c:
                        P.setdefault(u.seq, 'war')
            for a in c.after:
                assert a.seq != c.seq
                P.setdefault(a.seq, 'ord')
            for k in c.uses:
                users.setdefault(k, []).append(c)
            for k in c.defs:
                lastdef[k] = c
                users[k] = []
        for d, us in self.scc_users.items():
            group = {d} | {u.seq for u in us}
            for u in us:
                for p in self.pred[u.seq]:
                    if p not in group:
                        self.pred[d].setdefault(p, 'ord')

    def prepare(self):
        self.build_deps()
        n = len(self.ins)
        self.succ = [[] for _ in range(n)]
        self.haz = [[] for _ in range(n)]
        self.dsneed = [[] for _ in range(n)]
        self.vmneed = [[] for _ in range(n)]
        self.first = [0] * n
        for c in self.ins:
            for p, why in self.pred[c.seq].items():
                pi = self.ins[p]
                self.succ[p].append(c.seq)
                ns = need_states(pi, c)
                if ns:
                    self.haz[c.seq].append((p, ns))
                if pi.kind == 'dsr' and (why in ('raw', 'waw') or c.kind == 'bar'):
                    self.dsneed[c.seq].append(p)
                elif pi.kind == 'dsw' and c.kind == 'bar':
                    self.dsneed[c.seq].append(p)
                elif pi.kind == 'dsr' and c.kind == 'dma' and pi in c.after:
                    self.dsneed[c.seq].append(p)
                if self.auto_vm:
                    if pi.kind == 'vld' and why in ('raw', 'waw') and c.kind != 'vld':
                        self.vmneed[c.seq].append(p)
                    elif pi.kind == 'dma' and c.kind in ('dsr', 'bar') and pi in c.after:
                        self.vmneed[c.seq].append(p)
            for p, back in self.entry:
                self.first[c.seq] = max(self.first[c.seq], need_states(p, c) - back)
        cur, self.nuse = {}, []
        self.born = [[] for _ in range(n)]
        self.reads = [[] for _ in range(n)]
        self.live0 = 0
        first_use = []
        for c in self.ins:
            us = {k for k in c.uses if k[0] == '%'}
            for k in us:
                if k not in cur:
                    cur[k] = len(self.nuse)
                    self.nuse.append(0)
                    self.live0 += 1
                    first_use.append(k)
                self.nuse[cur[k]] += 1
                self.reads[c.seq].append(cur[k])
            for k in c.defs:
                if k[0] == '%' and k not in us:
                    cur[k] = len(self.nuse)
                    self.nuse.append(0)
                    self.born[c.seq].append(cur[k])
        for k in (first_use if self.cyclic else self.live_out):
            self.nuse[cur[k]] += 1
        self.prepared = True

    def schedule(self, inorder=False, noise=None):
        if not self.prepared:
            self.prepare()
        ctx, ins = self.ctx, self.ins
        n = len(ins)
        left = [len(p) for p in self.pred]
        prio = [(i.prio + (noise[i.seq] if noise else 0), i.seq) for i in ins]
        out = []
        state_of = [0] * n
        okstate = list(self.first)
        dsn = [-1] * n
        dsidx = {}
        vmn = [-1] * n
        vmidx = {}
        vm_at = []
        open_scc = []
        nuse = list(self.nuse)
        live = [self.live0]
        ready = []
        st = dict(n=0, covered=-1, stall=0, vm=self.vm_entry, vcov=-1, acc=None)
        tm = Timer()
        tm.bar_cost, tm.vm_cost, tm.QUEUE = self.costs
        ds = []
        done_at = []
        lat = self.lds_lat

        def make_ready(c):
            for p, ns in self.haz[c]:
                okstate[c] = max(okstate[c], state_of[p] + 1 + ns)
            for p in self.dsneed[c]:
                dsn[c] = max(dsn[c], dsidx[p])
            for p in self.vmneed[c]:
                vmn[c] = max(vmn[c], vmidx[p])
            bisect.insort(ready, prio[c])

        def emit(i):
            i.time = tm.issue(i)
            st['n'] += i.states
            out.append(i)

        def emit_wait(target, slack=0):
            j = target
            while j + 1 < len(ds) and done_at[j + 1] <= tm.t + slack:
                j += 1
            cnt = len(ds) - 1 - j
            if cnt > 15:
                cnt = 15
                j = len(ds) - 1 - 15
            done = done_at[j]
            emit(Ins(ctx, f's_waitcnt lgkmcnt({cnt})', tag='w'))
            if done > tm.t + slack:
                st['stall'] += done - tm.t
                tm.t = done
            st['covered'] = j

        def emit_vmwait(j):
            cnt = len(vm_at) - 1 - j
            assert cnt <= 63
            emit(Ins(ctx, f's_waitcnt vmcnt({cnt})', tag='w'))
            if vm_at[j] > tm.t:
                st['stall'] += vm_at[j] - tm.t
                tm.t = vm_at[j]
            st['vcov'] = j

        def commit(c):
            state_of[c.seq] = st['n']
            if self.auto_vm and c.kind in ('vld', 'dma', 'vst') and st['vm'] > tm.t:
                tm.t = st['vm']
            emit(c)
            if c.kind in ('vld', 'dma', 'vst'):
                vmidx[c.seq] = len(vm_at)
                d = max(c.time + (c.lat or self.vm_lat), self.vm_first)
                vm_at.append(max(d, vm_at[-1] + (self.vm_rate if c.kind == 'dma' else 8)) if vm_at else d)
            if c.kind == 'vld':
                st['vm'] = c.time + self.gap_ld
            if c.kind in ('dsr', 'dsw'):
                dsidx[c.seq] = len(ds)
                ds.append(c)
                d = c.time + (c.lat if c.lat is not None else lat)
                done_at.append(max(d, done_at[-1]) if done_at else d)
            elif c.kind == 'vst':
                st['vm'] = c.time + (c.gap or self.gap_st)
            elif c.kind == 'dma':
                st['vm'] = c.time + (self.gap_dma if len(vm_at) >= self.burst else 24)
            if c.kind == 'mfma':
                st['acc'] = c.defs
            for v in self.reads[c.seq]:
                nuse[v] -= 1
                live[0] -= nuse[v] == 0
            live[0] += sum(nuse[v] > 0 for v in self.born[c.seq])
            if self.fifo and c.kind in ('vld', 'dma', 'vst'):
                if len(vm_at) >= self.fifo:
                    st['vm'] = max(st['vm'], vm_at[len(vm_at) - self.fifo])
                elif len(vm_at) >= self.fifo - self.fifo_used:
                    st['vm'] = max(st['vm'], self.vm_first)
            if self.free_scc:
                if c in open_scc:
                    open_scc.remove(c)
                open_scc.extend(self.scc_users.get(c.seq, ()))
            ready.remove(prio[c.seq])
            for s in self.succ[c.seq]:
                left[s] -= 1
                if left[s] == 0:
                    make_ready(s)

        for i in range(n):
            if left[i] == 0:
                make_ready(i)
        while ready:
            if inorder:
                c = ins[min(r[1] for r in ready)]
                if dsn[c.seq] > st['covered']:
                    emit_wait(dsn[c.seq])
                if okstate[c.seq] > st['n']:
                    emit(Ins(ctx, f's_nop {okstate[c.seq] - st["n"] - 1}', tag='pad'))
                commit(c)
                continue
            cov, now = st['covered'], st['n']
            tv = max(tm.t, tm.vec)
            shadow = tm.t < tm.vec
            sal, bar, mf, mem, late, va, blocked, hz = [], [], [], [], [], [], [], False
            vblocked = []
            cand = ready
            if self.limit:
                cand = [r for r in ready if len(self.born[r[1]]) < 2 or live[0] + len(self.born[r[1]]) <= self.limit]
                if not any(ins[q].kind != 'bar' for _, q in cand):
                    cand = cand + [min((r for r in ready if r not in cand), key=lambda r: r[1], default=None)]
                    cand = sorted(r for r in cand if r)
            for _, q in cand:
                c = ins[q]
                if open_scc and c.sccdef and c not in open_scc:
                    continue
                if vmn[q] > st['vcov']:
                    vblocked.append(q)
                elif dsn[q] > cov:
                    blocked.append(q)
                elif okstate[q] > now:
                    hz = True
                else:
                    k = c.kind
                    if k == 'valu':
                        va.append(c)
                    elif k == 'mfma':
                        mf.append(c)
                    elif k in MEM:
                        if tm.when(c) <= tv and (k in ('dsr', 'dsw') or st['vm'] <= tv):
                            mem.append(c)
                        else:
                            late.append(c)
                    elif k == 'bar':
                        bar.append(c)
                    else:
                        sal.append(c)
            if self.sticky and len(mf) > 1 and (self.sticky > 1 or mf[0].prio > -800):
                nxt = [c for c in mf if c.C == st['acc'] and c.op == tm.mop]
                if nxt:
                    mf = nxt
            want = [dsn[q] for q in blocked if done_at[dsn[q]] <= tm.t + self.slack]
            if self.auto_vm:
                vw = [vmn[q] for q in vblocked if vm_at[vmn[q]] <= tm.t]
                if vw:
                    emit_vmwait(max(vw))
                    continue
                if not mf:
                    if bar:
                        commit(bar[0])
                        continue
                    if want:
                        emit_wait(min(want), self.slack)
                        continue
                    go = [c for c in late if (c.kind in ('dsr', 'dsw') and tm.dsblock <= tv + 8) or (c.kind not in ('dsr', 'dsw') and st['vm'] <= tv + 8)]
                    best = min(mem + go + va + sal, key=lambda c: prio[c.seq], default=None)
                    if best is not None and not mem:
                        if best.kind in MEM and sal:
                            best = sal[0]
                        commit(best)
                        continue
            if shadow:
                if bar:
                    commit(bar[0])
                    continue
                if want:
                    emit_wait(min(want), self.slack)
                    continue
                if sal and tm.when(sal[0]) <= tm.t and not (mem and mem[0].kind not in ('dsr', 'dsw') and sal[0].kind == 'salu'):
                    commit(sal[0])
                    continue
                j = cov + 1
                while j < len(ds) and done_at[j] <= tm.t and ds[j].kind != 'dsr':
                    j += 1
                if j < len(ds) and done_at[j] <= tm.t:
                    emit_wait(j)
                    continue
            if mf and tm.when(mf[0]) <= tv:
                if va and mf[0].prio >= 0 and tv < tm.pipe + self.cadence:
                    commit(va[0])
                else:
                    commit(mf[0])
                continue
            if not mf and tm.pipe <= tv:
                wm = [dsn[q] for q in blocked if ins[q].kind == 'mfma' and done_at[dsn[q]] <= tm.t + self.slack]
                if wm:
                    emit_wait(min(wm), self.slack)
                    continue
            room = (tm.when(mf[0]) - tv) if mf else 1000
            if mem:
                fit = [c for c in mem if c.dur <= room]
                if room >= 8 and mem[0].dur > 4:
                    commit(mem[0])
                    continue
                if fit:
                    commit(fit[0])
                    continue
                if room >= 8:
                    commit(mem[0])
                    continue
            if va:
                fit = [c for c in va if c.dur <= room]
                if fit:
                    c = fit[0]
                    if room == 8 and c.dur == 4:
                        eights = [x for x in fit if x.dur == 8]
                        if eights and len(fit) - len(eights) == 1:
                            follow = any(left[s] == 1 and ins[s].kind == 'valu' and ins[s].dur == 4 and not self.haz[s]
                                         for s in self.succ[c.seq])
                            if not follow:
                                c = eights[0]
                    commit(c)
                    continue
                if not mf:
                    commit(va[0])
                    continue
            if sal and (not mf or tm.when(sal[0]) + 4 <= tm.when(mf[0])):
                commit(sal[0])
                continue
            if mf:
                commit(mf[0])
                continue
            if want:
                emit_wait(min(want), self.slack)
                continue
            if bar:
                commit(bar[0])
                continue
            if hz:
                emit(Ins(ctx, 's_nop 0', tag='pad'))
                continue
            opts = [(max(tm.when(c), st['vm'] if c.kind not in ('dsr', 'dsw') else 0), 0, c) for c in late[:1]]
            opts += [(done_at[dsn[q]], 1, dsn[q]) for q in blocked]
            opts += [(vm_at[vmn[q]], 2, vmn[q]) for q in vblocked]
            _, how, x = min(opts, key=lambda o: o[:2])
            (commit, emit_wait, emit_vmwait)[how](x)
        assert not any(left), 'dependency cycle'
        self.open_reads = [x for x in ds[st['covered'] + 1:] if x.kind == 'dsr']
        self.out = out
        self.cycles = max(tm.t, tm.vec)
        self.stall = st['stall']
        self.vm_exit = st['vm'] - self.cycles
        return out

    prepared = False
    slack = 0
    gap_st = 0
    gap_dma = 0
    vm_entry = 0
    auto_vm = False
    limit = 0
    live_out = ()
    cyclic = False
    fifo = 0
    fifo_used = 0
    cadence = 0
    sticky = 0
    costs = (0, 0, 28)
    burst = 0
    free_scc = False
    gap_ld = 0
    vm_lat = 700
    vm_first = 0
    vm_rate = 0
    entry = ()


def occupancy(ctx, seq, cyclic, live_out=(), live_in=()):
    n = len(seq)
    N = 2 * n
    full = (1 << N) - 1
    occ = {}

    def mark(k, a, b):
        m = ((1 << (b - a + 1)) - 1) << a
        m = (m & full) | (m >> N if cyclic else 0)
        occ[k] = occ.get(k, 0) | m

    D = [[k for k in i.defs if k[0] == '%'] for i in seq]
    Us = [[k for k in i.uses if k[0] == '%'] for i in seq]
    live = set(live_out)
    if cyclic:
        for p in range(n - 1, -1, -1):
            live.difference_update(D[p])
            live.update(Us[p])
    end = {k: N - 1 for k in live}
    nxt = {}
    for p in range(n - 1, -1, -1):
        i = seq[p]
        early = i.kind in ('mfma', 'dsr', 'vld')
        far = 0
        if i.kind in ('dsr', 'vld'):
            far = min([first for first in (nxt.get(k) for k in D[p]) if first is not None], default=N - 1) if D[p] else 0
        for k in D[p]:
            a = 2 * p + (0 if early else 1)
            e = max(end.pop(k, 0), 2 * p + 1, far)
            if i.kind == 'mfma':
                e = max(e, 2 * (p + 9))
            mark(k, a, e)
        for k in Us[p]:
            e = 2 * p
            if i.kind == 'vst' and k in i.data:
                e = 2 * (p + 3)
            elif i.kind == 'mfma' and k in i.C:
                e = 2 * (p + 4)
            if k in end:
                end[k] = max(end[k], e)
            else:
                end[k] = e
            nxt[k] = 2 * p
    for k, e in end.items():
        mark(k, 0, e)
    if not cyclic:
        extra = set(end) - set(live_in)
        assert not extra, f'undefined at block entry: {sorted(extra)[:8]}'
    return occ, set(end)


def pressure(occ, N, keep=lambda k: True):
    diff = [0] * (N + 1)
    for k, m in occ.items():
        if not keep(k):
            continue
        edges = m ^ (m << 1)
        sign = 1
        while edges:
            low = edges & -edges
            diff[low.bit_length() - 1] += sign
            sign = -sign
            edges ^= low
    out, run = [], 0
    for x in range(N):
        run += diff[x]
        out.append(run)
    return out


def allocate(ctx, seq, pool, cyclic, live_out=(), live_in=(), tries=400, seed=0):
    occ, entry = occupancy(ctx, seq, cyclic, live_out, live_in)
    names = sorted({k[1] for k in occ})
    N = 2 * len(seq)
    poolset = set(pool)
    fixed = {r: 0 for r in pool}
    todo = []
    for nm in names:
        if nm in ctx.phys:
            bank, base = ctx.phys[nm]
            if bank == 'v':
                for e in range(ctx.size[nm]):
                    if base + e in poolset:
                        m = occ.get(('%', nm, e), 0)
                        assert not fixed[base + e] & m, f'pinned overlap {nm}'
                        fixed[base + e] |= m
        else:
            todo.append(nm)
    press = pressure(occ, N, lambda k: k[1] in todo or (ctx.phys[k[1]][0] == 'v' and ctx.phys[k[1]][1] + k[2] in poolset))
    masks = {nm: [occ.get(('%', nm, e), 0) for e in range(ctx.size[nm])] for nm in todo}
    length = {nm: sum(bin(m).count('1') for m in masks[nm]) for nm in todo}

    union = {}
    for nm in todo:
        m = 0
        for x in masks[nm]:
            m |= x
        union[nm] = m
    full = (1 << N) - 1
    peak = press.index(max(press))
    rng = random.Random(seed)
    for t in range(tries):
        rot = (peak if t % 3 == 0 else rng.randrange(N)) if cyclic else 0
        jit = 0 if t == 0 else rng.choice((0, 4, 16, 60))

        def start(nm):
            m = union[nm]
            m = ((m >> rot) | (m << (N - rot))) & full
            return (m & -m).bit_length() + rng.random() * jit

        order = sorted(todo, key=lambda nm: (start(nm), -ctx.size[nm], -length[nm]))
        busy = dict(fixed)
        res = {}
        ok = True
        mode = t % 4
        for nm in order:
            sz = ctx.size[nm]
            mk = masks[nm]
            opts = [b for b in pool if (sz == 1 or b % 2 == 0)
                    and all(busy.get(b + e, full) & mk[e] == 0 and (b + e) in poolset for e in range(sz))]
            if not opts:
                ok = False
                break
            u = union[nm]
            if sz >= 4:
                opts = [b for b in opts if (b + sz - pool[0]) % 4 == 0] or opts
                if mode & 1:
                    b = max(opts, key=lambda b: sum(bin(busy[b + e]).count('1') for e in range(sz)))
                else:
                    b = opts[0]
            else:
                def mates(b):
                    q = pool[0] + (b - pool[0]) // 4 * 4
                    return sum(bin(busy.get(r, full) & u).count('1') for r in range(q, q + 4))
                b = max(opts, key=mates) if mode & 2 or True else opts[-1]
            res[nm] = b
            for e in range(sz):
                busy[b + e] |= mk[e]
        if ok:
            for nm, b in res.items():
                ctx.phys[nm] = ('v', b)
            return max(press), press, entry
    raise RuntimeError(f'allocation failed, max pressure {max(press)} of {len(pool)}')


def physical(ctx, seq):
    out = []
    for i in seq:
        j = Ins(ctx, ctx.subst(i.text), tag=i.tag)
        out.append(j)
    return out


def estimate(seq):
    tm = Timer()
    for i in seq:
        i.time = tm.issue(i)
    return max(tm.t, tm.vec)


def chain_count(seq):
    prev, n = None, 0
    for i in seq:
        if i.kind == 'mfma':
            if prev is not None and list(prev.defs) == list(i.C) and i.time - prev.time == 16:
                n += 1
            prev = i
    return n


def fix_vmcnt(ctx, seq):
    w = [p for p, i in enumerate(seq) if i.tag == 'vmw']
    assert len(w) == 1 and not any(i.kind in ('dma', 'vld') for i in seq[:w[0]])
    seq[w[0]].text = f's_waitcnt vmcnt({sum(i.kind == "vst" for i in seq[:w[0]])})'
```

```python
from parts import *


class Rec:
    def __init__(self, ctx):
        self.ctx = ctx
        self.cur = 0
        self.items = []

    def __call__(self, text, **kw):
        self.items.append((text, kw))


def tile0(ctx, safe, exm=False):
    xf = lambda s: f'%xf0{s}'
    for s in range(6):
        ctx.new(f'xf0{s}', 4)
    m = Rec(ctx)
    for nm, w, xa in (('ka', WK, False), ('qa', WQ, False), ('va', WV, True)):
        for jd in range(3):
            proj_chain(m, f'{nm}0{jd}', w, xf, jd, xa)
    v = Rec(ctx)
    need = [6 * (k // 4 + 1) for k in range(24)]
    if safe:
        sumsq(v, 'ssk0', [f'ka0{jd}' for jd in range(3)], f's{S_EPSQ}')
        sumsq(v, 'ssq0', [f'qa0{jd}' for jd in range(3)], f's{S_EPSQ}')
        qk_norm(v, 0)
        qk_pack(v, 0)
        need += [99] * (len(v.items) - 24)
    else:
        half_raw(v, 0, 'k')
        half_raw(v, 0, 'q')
        half_extra(v, 0, 'k', exm)
        half_extra(v, 0, 'q', exm)
        half_norm(v, 0, not exm)
        half_scale(v, 0)
        half_check(v, 0)
        need += [99] * (len(v.items) - 24)
    return m.items, v.items, need


def head_part(b, cfg, safe, after=()):
    m, v, need = tile0(b.ctx, safe)
    hm, cut = cfg['hm'], cfg['cut']
    assert cut <= len(v) and (cut == 0 or need[cut - 1] < hm)
    rd = []
    for s in range(6):
        aft = [after[s]] if after else []
        rd.append(xread(b, f'xf0{s}', 0, s, L_X, after=aft, prio=-500))
    ch = []
    for text, kw in m[:hm]:
        ch.append(b(text, **kw))
        b.cur += 0.01
    b.cur += cfg['head_prio']
    for text, kw in v[:cut]:
        b(text, **kw)
    return rd, ch


def front_part(b, cfg, safe, mf):
    c = b.ctx
    m0, v0, _ = tile0(c, safe, cfg['exm'])
    if not safe and not cfg['exm']:
        b(f'ds_read_b128 %eb, v{V_QKE} offset:32', prio=-550)
        b(f'ds_read2_b64 %ec, v{V_QKE} offset0:6 offset1:9', prio=-550)
        b(f'ds_read_b128 %ea, v{V_QKE}', prio=-550)
        b(f'ds_read_b32 %tx, v{V_VE} offset:192', prio=-300)
        b(f'v_mov_b32_dpp %tx, v{V_BEX + 1} quad_perm:[0,1,2,3] row_mask:0x7 bank_mask:0xf', prio=10)
    for jd in range(3):
        c.new(f'v0{jd}', 4)
        c.new(f'v1{jd}', 4)
    b.cur = cfg['hm']
    for text, kw in m0[cfg['hm']:]:
        mf.append(b(text, **kw))
        b.cur += 1
    for k, (text, kw) in enumerate(v0):
        if k >= cfg['cut']:
            b(text, **dict(dict(prio=16 if k < (29 if safe else 31 if cfg['exm'] else 41) else 36), **kw))
    b.cur = 20
    for jd in range(3):
        scale_pack(b, f'va0{jd}', None, lambda e: f'%v0{jd}.{e}', 0)
    b.cur = 54


def lds_write(b, addr, t, n, off, mode, after=()):
    w = min(n, 4 >> mode)
    return [b(f'ds_write_b{32 * w} v{addr}, {t}.{k}' + (f':{k + w - 1}' if w > 1 else '') + f' offset:{off + 4 * k}', prio=-100, after=after)
            for k in range(0, n, w)]


def barrier(b, after, step=1):
    out = []
    for k in range(3 * step + 1):
        out.append(b('s_barrier', after=after if k == 0 else [out[-1]], tag='barx' if k % max(1, step) else f'bar{k // max(1, step)}', prio=-2000))
    return out


def later_tiles(b, cfg, safe, mf, gate=()):
    c = b.ctx
    LEAD = cfg['lead']
    xrd = []
    for j in range(1, 3):
        xf = lambda s: f'%xf{j}{s}'
        for s in range(6):
            k = len(mf) + s - LEAD
            xrd.append(xread(b, f'xf{j}{s}', j, s, L_X, after=list(gate) + ([mf[min(k, len(mf) - 1)]] if k >= 0 else []), prio=-500))
        for jd in range(3):
            mf += proj_chain(b, f'ka{j}{jd}', WK, xf, jd, False)
        if safe:
            sumsq(b, f'ssk{j}', [f'ka{j}{jd}' for jd in range(3)], f's{S_EPSQ}')
        else:
            half_raw(b, j, 'k')
            half_extra(b, j, 'k', cfg['exm'])
        for jd in range(3):
            mf += proj_chain(b, f'qa{j}{jd}', WQ, xf, jd, False)
        t = b.cur
        b.cur = t - 20
        if safe:
            sumsq(b, f'ssq{j}', [f'qa{j}{jd}' for jd in range(3)], f's{S_EPSQ}')
            qk_norm(b, j)
            b.cur = t
            qk_pack(b, j)
        else:
            half_raw(b, j, 'q')
            half_extra(b, j, 'q', cfg['exm'])
            half_norm(b, j, not cfg['exm'])
            b.cur = t
            half_scale(b, j)
            half_check(b, j)
        for jd in range(3):
            mf += proj_chain(b, f'va{j}{jd}', WV, xf, jd, True)
            t = b.cur
            b.cur = t - 30
            if j < 2:
                scale_pack(b, f'va{j}{jd}', None, lambda e: f'%v0{jd}.{e}', 2 * j)
            else:
                scale_pack(b, f'va{j}{jd}', None, lambda e: f'%v1{jd}.{e}', 0)
            b.cur = t
    return xrd


def advance(b, cfg, T1, barm, claim=None):
    b(f'v_xor_b32 v{V_XA0}, {TOG}, v{V_XA0}', prio=T1 + cfg['upd'][0])
    b(f'v_xor_b32 v{V_XA1}, {TOG}, v{V_XA1}', prio=T1 + cfg['upd'][0])
    b(f's_add_u32 s{S_T0}, s{S_IT}, 2')
    point(b, S_SRDX, S_PX, S_OFF, f's_cmp_le_u32 s{S_T0}, s{S_LAST}' if claim else f's_cmp_lt_u32 s{S_T0}, s{S_N}')
    dma = []
    for i in range(5):
        if i == 4:
            b(f's_mov_b32 m0, s{S_M0B}')
        else:
            b(f's_add_u32 m0, s{S_M0A}, {4096 * i}')
        dma.append(b(f'buffer_load_dwordx4 v{V_DMA + i}, s[{S_SRDX}:{S_SRDX + 3}], 0 offen{cfg["ld_flags"]} lds', after=[barm], prio=-400, tag=f'dma{i}'))
    b(f's_xor_b32 s{S_M0A}, s{S_M0A}, {TOG}')
    b(f's_xor_b32 s{S_M0B}, s{S_M0B}, s{S_M0T}')
    for k in range(4, 0, -1):
        b(f's_mov_b32 s{S_OFF + k}, s{S_OFF + k - 1}')
    b(f's_add_u32 s{S_J}, s{S_J}, s{S_DJ}')
    b(f's_add_u32 s{S_OFF}, s{S_OFF}, s{S_DOFF}')
    b(f's_cmp_ge_u32 s{S_J}, 72')
    b(f's_cselect_b32 s{S_T0}, 72, 0')
    b(f's_cselect_b32 s{S_T1}, s{S_DCAR}, 0')
    b(f's_sub_u32 s{S_J}, s{S_J}, s{S_T0}')
    b(f's_add_u32 s{S_OFF}, s{S_OFF}, s{S_T1}')
    if not claim:
        return None
    k, o, v, t, u = (f's{S_U + q}' for q in range(5))
    rd = []
    if claim == 'repeat':
        b(f's_ff1_i32_b32 {k}, s{S_REM}')
    else:
        r = b.ctx.new('clr')
        rd = [b(f'ds_read_u16 {r}, v{V_PR} offset:512', after=[barm], prio=-280, tag='clr')]
        b(f'v_readfirstlane_b32 {k}, {r}', prio=-700)
    b(f's_mul_i32 {o}, {k}, 2688')
    b(f's_add_u32 {o}, {o}, s{S_OFFP}')
    b(f's_add_u32 {t}, {k}, s{S_JP}')
    b(f's_cmp_ge_u32 {t}, 72')
    b(f's_cselect_b32 {t}, s{S_DCAR}, 0')
    b(f's_add_u32 {o}, {o}, {t}')
    b(f's_mov_b32 s{S_SL}, s{S_SL + 1}')
    b(f's_mov_b32 s{S_SL + 1}, s{S_SL + 2}')
    b(f's_add_u32 {t}, {k}, {NFIX}')
    b(f's_add_u32 s{S_T0}, s{S_IT}, 3')
    b(f's_cmp_lt_u32 {k}, s{S_POOL}')
    b(f's_cselect_b32 {v}, 1, 0')
    b(f's_cselect_b32 {o}, {o}, 0')
    b(f's_cmp_lt_u32 s{S_T0}, s{S_N}')
    b(f's_cselect_b32 s{S_OFF}, s{S_OFF}, {o}')
    b(f's_cselect_b32 s{S_SL + 2}, s{S_T0}, {t}')
    b(f's_cselect_b32 {v}, 0, {v}')
    b(f's_cselect_b32 {u}, 0, 1')
    if claim == 'repeat':
        b(f's_sub_u32 {t}, s{S_REM}, {u}')
        b(f's_and_b32 s{S_REM}, s{S_REM}, {t}')
    else:
        b(f's_add_u32 {t}, {k}, 1')
        b(f's_mul_i32 {t}, {t}, {u}')
        b(f's_cmp_lt_u32 {t}, s{S_POOL}')
        b(f's_cselect_b32 s{S_POOL}, s{S_POOL}, 0')
        b(f's_add_u32 {t}, s{S_IT}, 4')
        b(f's_cmp_ge_u32 {t}, s{S_N}')
        b(f's_cselect_b32 s{S_SRDC + 2}, s{S_POOL}, 0')
        b(f'v_mov_b32 v{V_CL}, 1', prio=-410, tag='w0')
        b(f'buffer_atomic_add v{V_CL}, v{V_DMA}, s[{S_SRDC}:{S_SRDC + 3}], 0 offen sc0 sc1', prio=-390, tag='w0')
    b(f's_lshl_b32 {t}, {v}, s{S_SL + 2}')
    b(f's_or_b32 s{S_MASK}, s{S_MASK}, {t}')
    b(f's_add_u32 s{S_LAST}, s{S_LAST}, {v}')
    return rd


def attention(b, cfg, safe, T1, mf, rec_after=(), wr_after=(), step=(QKE_S, VE_S, 16), exm=None):
    c = b.ctx
    e_at = mf[len(mf) - cfg['e_lead']]
    exm = exm or (f'v{V_QKE}' if safe else None)
    ea, eb, ec = c.new('ea', 4), c.new('eb', 4), c.new('ec', 4)
    tx = c.new('tx', 1)
    exk = lambda j: f'%ex{j}.0' if exm else f'%nr{j}.2'
    if exm:
        for t, off in ((ea, 0), (eb, 16), (ec, 48)):
            b(f'ds_read_b128 {t}, {exm} offset:{off}', after=[e_at] + list(rec_after), prio=-300)
        b(f'ds_read_b32 {tx}, v{V_VE} offset:192', after=[e_at] + list(rec_after), prio=-299)
    for jd in range(3):
        b(f'ds_read2_b32 %v1{jd}.2:3, v{V_VE} offset0:{16 * jd} offset1:{16 * jd}', after=[mf[len(mf) - cfg['ve_lead']]] + list(rec_after), prio=-298)
    if step:
        b(f'v_add_u32 v{V_QKE}, {step[0]}, v{V_QKE}', prio=T1 + cfg['upd'][1])
        b(f'v_add_u32 v{V_VE}, {step[1]}, v{V_VE}', prio=T1 + cfg['upd'][1])

    A = cfg['att']
    for j in range(3 if exm else 0):
        b.cur = T1 + A['ex'][j]
        ex = c.new(f'ex{j}', 4)
        b(f'{H32} {ex}, {ea}, %qp{j}, {vr(V_BEX + 2 * j, 4)}')
        b(f'{H32} {ex}, {eb}, %kp{j}, {ex}')
        b(f'{H32} {ex}, {ec}, %tp{j}.2:5, {ex}')
        b(f'v_mov_b32_dpp {tx}, {ex}.1 quad_perm:[0,1,2,3] row_mask:{hex(1 << j)} bank_mask:0xf')
    if exm and not safe:
        b(f'v_mov_b32 v{V_ML}, 0')
    b.cur = T1 + A['tx']
    if safe:
        mx, mt = c.new('mxx', 1), c.new('mtx', 1)
        b(f'v_mov_b32 {mx}, {tx}')
        for ctl in ('quad_perm:[1,0,3,2]', 'quad_perm:[2,3,0,1]', 'row_half_mirror', 'row_mirror'):
            b(f'v_max_f32_dpp {mx}, {mx}, {mx} {ctl} row_mask:0xf bank_mask:0xf')
        group_max(b, mx, mt)
        b(f'v_sub_f32 {tx}, {tx}, {mx}')
    b(f'v_exp_f32 {tx}, {tx}')
    b(f'{CVT} {tx}, {tx}, {tx}')
    pw = b(f'ds_write_b16 v{V_PW}, {tx}', prio=-200)

    o_wr = []
    marks = {}

    def s_tile(jq, after):
        if cfg['tail32']:
            for e in range(2):
                b(f'v_mov_b32 %tp{jq}.{e}, 0', after=[marks[jq - 1][0]] if jq else [e_at], prio=-50)
        for jk in range(3):
            s = c.new(f's{jq}{jk}', 4)
            b(f'{H32} {s}, %kp{jk}, %qp{jq}, {BIAS(jq, jk)}', after=[after[jk]] if after else [])
            if cfg['tail32']:
                b(f'{H32} {s}, %tp{jk}.2:5, %tp{jq}.0:3, {s}')
        for jk in range(0 if cfg['tail32'] else 3):
            b(f'{H16} %s{jq}{jk}, %tp{jk}.4:5, %tp{jq}.2:3, %s{jq}{jk}')

    def softmax(jq):
        p0 = c.new(f'p0{jq}', 4)
        regs = [f'%s{jq}{jk}.{r}' for jk in range(3) for r in range(4)] + [exk(jq)]
        if safe:
            mx, mt = c.new(f'mx{jq}', 1), c.new(f'mt{jq}', 1)
            b(f'v_max3_f32 {mx}, {regs[12]}, {regs[0]}, {regs[1]}')
            for k in range(2, 12, 2):
                b(f'v_max3_f32 {mx}, {mx}, {regs[k]}, {regs[k + 1]}')
            group_max(b, mx, mt)
        mk = []
        for jk in range(3):
            for r in (0, 2):
                for q in (r, r + 1):
                    x = f'%s{jq}{jk}.{q}'
                    if safe:
                        b(f'v_sub_f32 {x}, {x}, {mx}')
                    mk.append(b(f'v_exp_f32 {x}, {x}'))
                d = f'{p0}.{2 * jk + r // 2}' if jk < 2 else f'v{V_P1 + r // 2}'
                b(f'{CVT} {d}, %s{jq}{jk}.{r}, %s{jq}{jk}.{r + 1}')
        x = exk(jq)
        if safe:
            b(f'v_sub_f32 {x}, {x}, {mx}')
        b(f'v_exp_f32 {x}, {x}')
        b(f'{CVT} v{V_P1 + 3}, {x}, 0')
        marks[jq] = mk

    def pv(jq):
        la = c.new(f'la{jq}', 4)
        p0, p1 = f'%p0{jq}', vr(V_P1, 4)
        b(f'{M32} {la}, {vr(V_ONES, 4)}, {p1}, 0')
        b(f'{M32} {la}, {vr(V_ONES, 4)}, {p0}, {la}')
        for jd in range(3):
            oa = c.new(f'oa{jq}{jd}', 4)
            b(f'{M32} {oa}, %v1{jd}, {p1}, 0')
            b(f'{M32} {oa}, %v0{jd}, {p0}, {oa}')

    def o_post(jq):
        la = f'%la{jq}.0'
        b(f'v_rcp_f32 {la}, {la}')
        if not safe:
            b(f'v_max3_u32 v{V_ML}, v{V_ML}, {la}, %la{jq}.1')
        op0, op1 = c.new(f'op0{jq}', 4), c.new(f'op1{jq}', 2)
        for jd in range(2):
            scale_pack(b, f'oa{jq}{jd}', la, lambda e: f'{op0}.{e}', 2 * jd)
        n0 = len(o_wr)
        o_wr.extend(lds_write(b, V_OW, op0, 4, L_O + jq * 6144, cfg['ow'], wr_after))
        scale_pack(b, f'oa{jq}2', la, lambda e: f'{op1}.{e}', 0)
        o_wr.extend(lds_write(b, V_OT, op1, 2, L_O + jq * 6144 + 4096, cfg['ow'], wr_after))
        marks['w', jq] = o_wr[n0:]

    def extra_pv(after):
        pa0, pa1 = c.new('pa0', 4), c.new('pa1', 4)
        b(f'ds_read_b128 {pa0}, v{V_PR}', after=[pw] + after, prio=-250)
        b(f'ds_read_b128 {pa1}, v{V_PR} offset:64', after=[pw] + after, prio=-250)
        lx = c.new('lx', 4)
        b(f'{M32} {lx}, {pa0}, {vr(V_ONES, 4)}, 0')
        b(f'{M32} {lx}, {pa1}, {vr(V_ONES, 4)}, {lx}')
        for jd in range(3):
            ox = c.new(f'ox{jd}', 4)
            b(f'{M32} {ox}, {pa0}, %v0{jd}, 0')
            b(f'{M32} {ox}, {pa1}, %v1{jd}, {ox}')
        b.cur = T1 + A['xo']
        b(f'v_rcp_f32 {lx}.0, {lx}.0')
        if not safe:
            b(f'v_max3_u32 v{V_ML}, v{V_ML}, {lx}.0, {lx}.1')
        b(f'v_mul_f32 %ox0.0, %ox0.0, {lx}.0')
        for jd in (1, 2):
            b(f'v_mul_f32_dpp %ox0.0, %ox{jd}.0, {lx}.0 quad_perm:[0,1,2,3] row_mask:{hex(1 << jd)} bank_mask:0xf')
        b(f'{CVT} %ox0.0, %ox0.0, %ox0.0')
        o_wr.append(b(f'ds_write_b16 v{V_OE}, %ox0.0', prio=-100, after=wr_after))
        marks['w', 3] = o_wr[-1:]
        if step:
            b(f'v_add_u32 v{V_OE}, {step[2]}, v{V_OE}', prio=T1 + cfg['upd'][1])

    b.cur = T1 + A['s0']
    s_tile(0, None)
    for jq in range(3):
        b.cur = T1 + A['sm'][jq]
        softmax(jq)
        if jq < 2:
            b.cur = T1 + A['s'][jq]
            d = A['s_after'][jq]
            s_tile(jq + 1, [marks[jq][min(11, d + A['s_step'] * jk)] for jk in range(3)])
        b.cur = T1 + A['pv'][jq]
        pv(jq)
        b.cur = T1 + A['op'][jq]
        o_post(jq)
        if jq == A['x_after'] // 12:
            b.cur = T1 + A['x']
            extra_pv([marks[jq][A['x_after'] % 12]])

    return o_wr, marks


def build_loop(ctx, cfg, safe, label):
    b = Block(ctx, 'loop', lds_lat=cfg['lds_lat'])
    b.gap_st, b.gap_dma, b.slack = cfg['gap_st'], cfg['gap_dma'], cfg['slack']
    b.cyclic, b.limit, b.sticky = True, cfg['limit'], cfg['sticky']
    b.costs = (4 * cfg['bar_cost'], 4 * cfg['vm_cost'], 4 * cfg['queue'])
    c = ctx
    LEAD = cfg['lead']
    for j in range(3):
        for jd in range(3):
            c.new(f'y{j}{jd}', 4)

    b.cur = 0
    point(b, S_SRDO, S_PO, S_OFF + 4, f's_cmp_ge_u32 s{S_IT}, 2')
    st0 = c.new('st0', 4)
    st1 = c.new('st1', 4)
    b(f'ds_read_b128 {st0}, v{V_OR} offset:{L_STAT}', prio=-600)
    stat_rd = b(f'ds_read_b128 {st1}, v{V_OR} offset:{L_STAT + 1024}', prio=-600)
    lnr = c.new('lnr', 4)
    b(f'{M32} {lnr}, {vr(V_SEL, 4)}, {st0}, 0', prio=-900)
    b(f'{M32} {lnr}, {vr(V_SEL, 4)}, {st1}, {lnr}', prio=-900)
    b.cur = cfg['ln_prio'][0]
    rs = [ln_scale(b, lnr, j, f'rs{j}') for j in range(3)]
    stores = []
    for j in range(3):
        b.cur = cfg['ln_prio'][j]
        stores += ln_finish(b, lambda jc: f'y{j}{jc}', rs[j], f'v{V_ST4 + j}', f'v{V_ST2 + j}', '0', f'yp{j}', cfg['st_flags'])

    mf = []
    front_part(b, cfg, safe, mf)
    xrd = later_tiles(b, cfg, safe, mf)
    T1 = b.cur

    wv = b('s_waitcnt vmcnt(0)', after=[mf[len(mf) - max(1, cfg['m_at'])]], tag='vmw')
    skew = 0 if safe else cfg['skew']
    clw = [] if safe else [b(f'ds_write_b16 v{V_PW}, v{V_CL} offset:512', after=[wv], prio=-700, tag='clw')]
    barm = barrier(b, [wv] + clw + xrd, skew)[-1]
    b(f's_sub_u32 s{S_U + 5}, s{S_SL + 1}, s{S_SL}')
    for q, st in enumerate((QKE_S, VE_S, 16)):
        b(f's_mul_i32 s{S_DLT + q}, s{S_U + 5}, {st}')
    clr = advance(b, cfg, T1, barm, 'repeat' if safe else 'new')
    o_wr, _ = attention(b, cfg, safe, T1, mf, step=[f's{S_DLT + q}' for q in range(3)])

    out_mf = []
    ord_ = []
    b.cur = T1 + 100
    OL = cfg['o_lead']
    for j in range(3):
        for p in range(6):
            t = c.new(f'of{j}{p}', 4)
            aft = out_mf[min(len(out_mf) + p - OL, len(out_mf) - 1)] if j else mf[min(len(mf) - cfg['o_first'] + p, len(mf) - 1)]
            ord_.append(b(f'ds_read_b128 {t}, v{V_OR} offset:{L_O + j * 6144 + p * 1024}', after=[aft], prio=-450))
        for jc in range(3):
            out_mf += proj_chain(b, f'y{j}{jc}', WO, lambda p: f'%of{j}{p}', jc, False, step=0.01)
        t = b.cur
        b.cur = T1 + cfg['ss_prio'][j]
        sumsq(b, f'ssy{j}', [f'y{j}{jc}' for jc in range(3)], f's{S_EPSY}')
        b.cur = t
    if cfg['m_at'] <= 0:
        wv.after.append(out_mf[-cfg['m_at']])
    b.cur = T1 + cfg['ss_prio'][2]
    sp = c.new('sp', 2)
    b(f'{CVT} {sp}.0, %ssy0, %ssy1')
    b(f'{CVT} {sp}.1, %ssy2, %ssy2')
    o_wr.extend(lds_write(b, V_OT, sp, 2, L_STAT, cfg['ow']))
    for r in (V_OR, V_OW, V_OT):
        b(f'v_xor_b32 v{r}, {TOG}, v{r}', prio=T1 + cfg['upd'][2])

    b.cur = T1 + 150
    H = cfg['h_lead']
    rd, ch = head_part(b, cfg, safe, after=[out_mf[min(len(out_mf) - 1, len(out_mf) - H + s)] for s in range(6)])
    for r in rd:
        r.after.append(barm)
    b(f's_add_u32 s{S_IT}, s{S_IT}, 1')
    b(f's_cmp_lt_u32 s{S_IT}, s{S_LAST}')
    barrier(b, o_wr + ord_ + [stat_rd] + clr, skew)
    ch[-1].after += [i for i in b.ins if i is not ch[-1]]
    b(f's_cbranch_scc1 {label}', after=list(b.ins), prio=2e6)
    b.entry = [(ch[-1 - k], 1 + 2 * k) for k in range(4)]
    return b


def place_loop(cfg, safe, pins, tries=300):
    ctx = Ctx()
    b = build_loop(ctx, cfg, safe, 'L_LOOP')
    seq = b.schedule()
    assert not b.open_reads
    _, entry = occupancy(ctx, seq, True)
    names = sorted({k[1] for k in entry})
    if pins:
        taken = {base + e for n, (size, (bank, base)) in pins.items() for e in range(size)}
        for n in names:
            if n in pins:
                ctx.phys[n] = pins[n][1]
        free = [r for r in POOL if r not in taken]
        for n in sorted((n for n in names if n not in pins), key=lambda n: -ctx.size[n]):
            sz = ctx.size[n]
            base = next(r for r in free if (sz == 1 or (r + sz - POOL[0]) % 4 == 0) and all(r + e in free for e in range(sz)))
            ctx.phys[n] = ('v', base)
            free = [r for r in free if not base <= r < base + sz]
    mp, _, entry = allocate(ctx, seq, POOL, True, tries=tries)
    return ctx, seq, b, mp, entry


CFG = dict(sticky=0, exm=0, at_flags=' sc0 sc1', at_prio=-390, skew=1, bar_cost=0, vm_cost=0, queue=7, limit=0, tail32=0, ow=0, lds_lat=112, slack=0, gap_st=272, gap_dma=80, lead=10, hm=42, cut=26, head_prio=60, ln_prio=[40, 80, 130],
           m_at=40, e_lead=30, ve_lead=12, st_flags=' nt', ld_flags=' nt', o_lead=10, o_first=10, h_lead=12,
           ss_prio=[25, 45, 62], upd=[50, 200, 300],
           att=dict(ex=[-10, -10, -10], tx=0, s0=-5, sm=[1, 21, 41], s=[2, 22], pv=[3, 23, 43], op=[20, 40, 60],
                    s_after=[3, 3], s_step=2, x_after=7, x=10, xo=10))


def report(cfg, safe, noise=None, dump=None):
    from collections import Counter
    ctx = Ctx()
    b = build_loop(ctx, cfg, safe, 'L')
    out = b.schedule(noise=noise)
    busy = sum((4 if '16x16x16' in i.op else 8) if i.kind == 'mfma' else i.dur for i in out if i.kind in ('mfma', 'valu') + MEM)
    print('safe', safe, 'cycles', b.cycles, 'stall', b.stall, 'chain', chain_count(out), 'busy', busy, dict(Counter(i.kind for i in out)))
    press = None
    try:
        mp, press, entry = allocate(ctx, out, POOL, True)
        print(' max pressure', mp, 'of', len(POOL))
    except RuntimeError as e:
        print(e)
    if dump:
        with open(dump, 'w') as f:
            for p, i in enumerate(out):
                f.write(f'{i.time:5d} {press[2*p] if press else 0:3d} {i.text} {i.tag}\n')


if __name__ == '__main__':
    report(CFG, False, dump='sched.txt')
    report(CFG, True)
```

```python
from ir import *

M32 = 'v_mfma_f32_16x16x32_bf16'
M16 = 'v_mfma_f32_16x16x16_bf16'
CVT = 'v_cvt_pk_bf16_f32'
H32 = 'v_mfma_f32_16x16x32_f16'
H16 = 'v_mfma_f32_16x16x16_f16'
CVH = 'v_cvt_pk_f16_f32'

TOG = 0x10000
L_O = 0x0000
L_STAT = 0x4800
L_X = 0x5000
NFIX = 20
NSLOT = 28
VE_S = 272
QKE_S = 336
VE_H = NSLOT * VE_S
QKE_H = NSLOT * QKE_S
L_VE = 0x9800
L_PE = L_VE + 3 * VE_H
L_MEAN = L_PE + 1024
L_PART = (L_STAT, L_STAT + 1024, L_MEAN + 768)
L_QKE = 0x19800
L_VE3 = L_QKE + 4 * QKE_H
L_OE = L_VE3 + VE_H
L_DUM = L_OE + 12288
L_OED = L_DUM + 1280
L_END = L_OED + 512
L_XE = TOG + L_X
L_TAB = L_XE + 12288
assert L_PART[2] + 1024 <= 0x10000 and L_END <= 163840
LDS_BYTES = 163840

_next = [0]


def _v(n, al=1):
    while _next[0] % al:
        _next[0] += 1
    b = _next[0]
    _next[0] += n
    return b


V_LANE = _v(1)
V_XA0 = V_LANE
V_XA1 = _v(1)
V_OR = _v(1)
V_OW = _v(1)
V_OT = _v(1)
V_QKE = _v(1)
V_VE = _v(1)
V_OE = _v(1)
V_PW = _v(1)
V_PR = _v(1)
V_DMA = _v(5)
V_ST4 = _v(3)
V_ST2 = _v(3)
V_FREE = _v(1)
V_BEX = _v(6, 2)
V_ML = V_BEX + 3
V_ONES = _v(4, 2)
V_SEL = _v(4, 2)
V_P1 = _v(4, 2)
V_SELH = _v(4, 2)
V_MX = _v(1)
V_CL = _v(1)
V_BIAS = _v(36, 2)
V_WO = _v(32, 2)
POOL0 = _v(0, 2)
POOL = list(range(POOL0, 256))


def vr(b, n=1):
    return f'v{b}' if n == 1 else f'v[{b}:{b + n - 1}]'


def WQ(jd, s): return f'a[{(jd * 6 + s) * 4}:{(jd * 6 + s) * 4 + 3}]'
def WK(jd, s): return f'a[{72 + (jd * 6 + s) * 4}:{72 + (jd * 6 + s) * 4 + 3}]'
def WV(jd, s): return f'a[{144 + (jd * 6 + s) * 4}:{144 + (jd * 6 + s) * 4 + 3}]'


def wo_reg(jc, p):
    f = jc * 6 + p
    return ('a', 216 + 4 * f) if f < 10 else ('v', V_WO + 4 * (f - 10))


def WO(jc, p):
    bank, b = wo_reg(jc, p)
    return f'{bank}[{b}:{b + 3}]'


def BIAS(jq, jk): return vr(V_BIAS + (jq * 3 + jk) * 4, 4)


S_SRDX = 8
S_SRDO = 12
S_H = 16
S_N = 17
S_IT = 18
S_J = 19
S_DJ = 20
S_DOFF = 21
S_DCAR = 22
S_OFF = 23
S_M0A = 28
S_M0B = 29
S_M0T = 30
S_C = 31
S_EPSQ = 32
S_EPSY = 33
S_T0 = 34
S_T1 = 35
S_NB = 36
S_J0 = 38
S_LAST = 45
S_FORCE = 44
S_PO = 40
S_PD = 42
S_PX = 60
S_POOL = 62
S_MASK = 70
S_SRDC = 64
S_JP = 68
S_OFFP = 69
S_SL = 71
S_DLT = 74
S_U = 77
S_REM = 100
S_BEE = 39
S_TOK48 = 7
NBYTES = 100270464


def xread(b, name, j, s, base, addr=None, **kw):
    t = b.ctx.new(name, 4)
    a0, a1 = addr or (f'v{V_XA0}', f'v{V_XA1}')
    return b(f'ds_read_b128 {t}, {a1 if s & 1 else a0} offset:{base + j * 6144 + (s >> 1) * 128}', **kw)


def proj_chain(b, acc, w, xf, jd, x_is_a, step=1.0):
    t = b.ctx.new(acc, 4)
    out = []
    for s in range(6):
        a_, b_ = (xf(s), w(jd, s)) if x_is_a else (w(jd, s), xf(s))
        out.append(b(f'{M32} {t}, {a_}, {b_}, {0 if s == 0 else t}'))
        b.cur += step
    return out


def sumsq(b, ss, accs, init):
    t = b.ctx.new(ss, 1)
    first = True
    for a in accs:
        for r in range(4):
            if first:
                if init is None:
                    b(f'v_mul_f32 {t}, %{a}.{r}, %{a}.{r}')
                else:
                    b(f'v_fma_f32 {t}, %{a}.{r}, %{a}.{r}, {init}')
                first = False
            else:
                b(f'v_fmac_f32 {t}, %{a}.{r}, %{a}.{r}')


def scale_pack(b, acc, scale, dst, off, cvt=CVT):
    last = None
    for r in (0, 2):
        if scale is not None:
            b(f'v_mul_f32 %{acc}.{r}, {scale}, %{acc}.{r}')
            b(f'v_mul_f32 %{acc}.{r + 1}, {scale}, %{acc}.{r + 1}')
        d = dst(off + r // 2)
        last = b(f'{cvt} {d}, %{acc}.{r}, %{acc}.{r + 1}')
    return last


def qk_norm(b, j, sfx=''):
    c = b.ctx
    nr = c.new(f'nr{j}{sfx}', 4)
    b(f'{CVT} v{V_P1}, %ssq{j}{sfx}, %ssk{j}{sfx}')
    m = b(f'{M32} {nr}, {vr(V_SEL, 4)}, {vr(V_P1, 4)}, 0', prio=-1000)
    b(f'v_rsq_f32 {nr}.1, {nr}.1')
    b(f'v_rsq_f32 {nr}.0, {nr}.0')
    b(f'v_mul_f32 {nr}.0, s{S_C}, {nr}.0')
    return m


def qk_dst(c, j, sfx, nm, jd):
    for t in ('qp', 'kp'):
        c.new(f'{t}{j}{sfx}', 4)
    c.new(f'tp{j}{sfx}', 6)
    if jd < 2:
        return f'%{nm}p{j}{sfx}', 2 * jd
    return f'%tp{j}{sfx}', 4 if nm == 'k' else 2


def qk_pack(b, j, sfx=''):
    for nm, r in (('k', 1), ('q', 0)):
        for jd in range(3):
            t, off = qk_dst(b.ctx, j, sfx, nm, jd)
            scale_pack(b, f'{nm}a{j}{jd}{sfx}', f'%nr{j}{sfx}.{r}', lambda e: f'{t}.{e}', off, CVH)


def half_regs(c, j, nm):
    out = []
    for jd in range(3):
        t, off = qk_dst(c, j, '', nm, jd)
        out += [f'{t}.{off}', f'{t}.{off + 1}']
    return out


def half_raw(b, j, nm):
    ss = b.ctx.new(f'nb{j}', 4) + ('.1' if nm == 'k' else '.0')
    for e, x in enumerate(half_regs(b.ctx, j, nm)):
        b(f'{CVH} {x}, %{nm}a{j}{e // 2}.{2 * (e & 1)}, %{nm}a{j}{e // 2}.{2 * (e & 1) + 1}')
        b(f'v_pk_fma_f16 {ss}, {x}, {x}, {ss}' if e else f'v_pk_mul_f16 {ss}, {x}, {x}')


def half_dot(b, j, dst, xs, ys):
    d = f'%nb{j}.{dst}'
    for e, (x, y) in enumerate(zip(xs, ys)):
        b(f'v_pk_fma_f16 {d}, {x}, {y}, {d}' if e else f'v_pk_mul_f16 {d}, {x}, {y}')


def half_extra(b, j, nm, skip=False):
    if skip:
        e = int(nm == 'k')
        b(f'v_mov_b32 %nb{j}.{2 + e}, %nb{j}.{e}')
        return
    for t in ('ea', 'eb', 'ec'):
        b.ctx.new(t, 4)
    main, tail = ('%eb', 2) if nm == 'k' else ('%ea', 0)
    half_dot(b, j, 3 if nm == 'k' else 2, half_regs(b.ctx, j, nm), [f'{main}.{e}' for e in range(4)] + [f'%ec.{tail}', f'%ec.{tail + 1}'])


def half_norm(b, j, extra=False):
    nr, rr = b.ctx.new(f'nr{j}', 4), b.ctx.new(f'rr{j}', 2)
    b(f'{H32} {nr}, {vr(V_SELH, 4)}, %nb{j}, 0', prio=-1000)
    b(f'v_rsq_f32 {nr}.0, {nr}.0')
    b(f'v_rsq_f32 {nr}.1, {nr}.1')
    b(f'v_mul_f32 {rr}.0, s{S_C}, {nr}.0')
    b(f'{CVH} {rr}.1, {rr}.0, {nr}.1')
    if extra:
        b.ctx.new('tx', 1)
        b(f'v_fma_f32 {nr}.2, {nr}.2, {rr}.0, v{V_BEX + 2 * j}')
        b(f'v_fmac_f32_dpp %tx, {nr}.3, {nr}.1 quad_perm:[0,1,2,3] row_mask:{hex(1 << j)} bank_mask:0xf')


def half_scale(b, j):
    for nm, sel in (('k', 1), ('q', 0)):
        for x in half_regs(b.ctx, j, nm):
            b(f'v_pk_mul_f16 {x}, {x}, %rr{j}.1 op_sel:[0,{sel}] op_sel_hi:[1,{sel}]')


def half_check(b, j):
    b(f'v_max3_u32 v{V_MX}, v{V_MX}, %nr{j}.0, %nr{j}.1')


def group_max(b, m, tmp):
    for op in ('v_permlane32_swap_b32', 'v_permlane16_swap_b32'):
        b(f'v_mov_b32 {tmp}, {m}')
        b(f'{op} {m}, {tmp}')
        b(f'v_max_f32 {m}, {m}, {tmp}')


def ln_scale(b, red, r, name):
    t = b.ctx.new(name, 1)
    b(f'v_mul_f32 {t}, 0x3baaaaab, {red}.{r}')
    b(f'v_rsq_f32 {t}, {t}')
    return t


def ln_finish(b, y, rs, va4, va2, soff, name, flags='', R=S_SRDO):
    c = b.ctx
    p0 = c.new(name + 'a', 4)
    p1 = c.new(name + 'b', 2)
    for jc in range(2):
        scale_pack(b, y(jc), rs, lambda e: f'{p0}.{e}', 2 * jc)
    s0 = b(f'buffer_store_dwordx4 {p0}, {va4}, s[{R}:{R + 3}], {soff} offen{flags}')
    scale_pack(b, y(2), rs, lambda e: f'{p1}.{e}', 0)
    s1 = b(f'buffer_store_dwordx2 {p1}, {va2}, s[{R}:{R + 3}], {soff} offen{flags}')
    return s0, s1


def point(b, srd, ptr, off, cond=None):
    b(f's_add_u32 s{srd}, s{ptr}, s{off}')
    b(f's_addc_u32 s{srd + 1}, s{ptr + 1}, 0')
    b(f's_sub_u32 s{srd + 2}, s{S_NB}, s{off}')
    if cond:
        b(cond)
        b(f's_cselect_b32 s{srd + 2}, s{srd + 2}, 0')
```

```python
import struct
from loop import *

LOG2E = 1.4426950408889634
NEG = -1e30
ROW = 196224
RGAP = ROW - 7 * 384
RING = 4
SHIFT_COS = 0.33
SW, SO, SR, S1, S2 = 48, 52, 56, 60, 64
S_LS = 46
S_RING = 68
S_GAP = 70
S_NP = 45
S_ARG = 76
S_FIRST = 71
ENTRY_LIVE = ('tid', 'l', 'g', 'c', 'big', 'ws0', 'ws1', 'ws2', 'rho0', 'rho1', 'rho2')
EDGE_LIVE = ('loR', 'hiR', 'loC', 'hiC')

for _a in range(0, 72 + 31 * 32):
    assert (_a * 911) >> 16 == _a // 72
for _a in range(4940, 5200):
    assert (_a * 58255) >> 22 == _a // 72
for _q in range(1280):
    assert (_q * 2731) >> 16 == _q // 24
for _q in range(192):
    assert (_q * 171) >> 10 == _q // 6
for _q in range(64):
    assert (_q * 37) >> 8 == _q // 7


def f32(x):
    return hex(struct.unpack('<I', struct.pack('<f', x))[0])


def uniq(ctx, stem, n=1):
    uniq.k += 1
    return ctx.new(f'{stem}_{uniq.k}', n)


uniq.k = 0


def rowcol(b, t):
    r, cc = uniq(b.ctx, 'r'), uniq(b.ctx, 'cc')
    b(f'v_mul_u32_u24 {r}, 37, {t}')
    b(f'v_lshrrev_b32 {r}, 8, {r}')
    b(f'v_mul_u32_u24 {cc}, 7, {r}')
    b(f'v_sub_u32 {cc}, {t}, {cc}')
    return r, cc


def slot_off(b, slot, dst, big, mask, nb7=None):
    a, q, s1 = uniq(b.ctx, 'a'), uniq(b.ctx, 'q'), slot
    if nb7:
        s1, e = uniq(b.ctx, 's'), uniq(b.ctx, 'e')
        b(f'v_min_u32 {s1}, {NFIX}, {slot}')
        b(f'v_add_u32 {q}, {32 - NFIX}, {slot}')
        b(f'v_lshrrev_b32 {q}, 5, {q}')
        b(f'v_sub_u32 {e}, {slot}, {s1}')
        b(f'v_mad_i32_i24 {e}, {q}, {nb7}, {e}')
    b(f'v_mul_u32_u24 {a}, s{S_DJ}, {s1}')
    b(f'v_add3_u32 {a}, {a}, {e}, s{S_J0}' if nb7 else f'v_add_u32 {a}, s{S_J0}, {a}')
    b(f'v_mul_u32_u24 {q}, 911, {a}')
    b(f'v_lshrrev_b32 {q}, 16, {q}')
    b(f'v_mul_u32_u24 {q}, s{S_DCAR}, {q}')
    b(f'v_mad_u32_u24 {q}, {s1}, s{S_DOFF}, {q}')
    b(f'v_bfe_u32 {a}, {mask}, {slot}, 1')
    b(f'v_cmp_ne_u32 vcc, 0, {a}')
    if nb7:
        b(f'v_mul_i32_i24 {e}, 2688, {e}')
        b(f'v_add3_u32 {dst}, {q}, {e}, s{S_TOK48}')
    else:
        b(f'v_add_u32 {dst}, s{S_TOK48}, {q}')
    b(f'v_cndmask_b32 {dst}, {big}, {dst}, vcc')


def walk_setup(b, edge):
    c = b.ctx
    sa, sb = 's3', f's{S_T1}'
    b(f's_mov_b32 s{S_NB}, {NBYTES}')
    b(f's_mov_b32 s{S_DCAR}, {7 * ROW - 72 * 7 * 384}')
    if True:
        b(f's_mul_i32 {sa}, s2, 911')
        b(f's_lshr_b32 {sa}, {sa}, 16')
        b(f's_mul_i32 {sb}, {sa}, 72')
        b(f's_sub_u32 s{S_J0}, s2, {sb}')
        b(f's_mul_i32 {sa}, {sa}, {7 * ROW}')
        b(f's_mul_i32 {sb}, s{S_J0}, {7 * 384}')
        b(f's_add_u32 {sa}, {sa}, {sb}')
        b(f's_add_u32 s{S_OFF + 2}, {sa}, {3 * ROW + 3 * 384}')
        b(f's_add_u32 s{S_TOK48}, {sa}, {9 * ROW + 9 * 384}')
        b(f's_mov_b32 s{S_DJ}, 31')
        b(f's_mov_b32 s{S_DOFF}, {3 * 7 * ROW + 31 * 7 * 384}')
        b(f's_mov_b32 s{S_N}, {NFIX}')
        b(f's_cmp_lt_u32 s2, 240')
        b(f's_cselect_b32 s{S_NP}, {NFIX + 8}, {NFIX + 4}')
    if not edge:
        return
    b('s_mov_b32 s5, 0')
    b('s_mov_b32 s6, 0')
    b('s_cmp_lt_u32 s2, 247')
    b('s_cbranch_scc1 L_inner')
    b(f's_mov_b32 s{S_DJ}, 0')
    b(f's_mov_b32 s{S_J0}, 0')
    b(f's_sub_u32 {sa}, s2, 247')
    b(f's_and_b32 {sa}, {sa}, 3')
    b(f's_mul_i32 {sa}, {sa}, 7')
    b(f's_add_u32 {sa}, {sa}, 3')
    b(f's_mov_b32 {sb}, {ROW}')
    b('s_cmp_lt_u32 s2, 251')
    b(f's_cselect_b32 {sb}, {sb}, 384')
    b('s_cselect_b32 s6, 1, 0')
    b('s_cselect_b32 s5, 0, 1')
    b(f's_mul_i32 s{S_OFF + 2}, {sa}, {sb}')
    b(f's_mul_i32 s{S_DOFF}, {sb}, 28')
    b('s_cmp_lt_u32 s2, 255')
    b(f's_cselect_b32 s{S_N}, 18, 1')
    b(f's_cselect_b32 s{S_NP}, 18, 1')
    b(f's_cselect_b32 s{S_OFF + 2}, s{S_OFF + 2}, 0')
    b('s_cselect_b32 s6, s6, 1')
    b(f's_add_u32 s{S_TOK48}, s{S_OFF + 2}, {6 * ROW + 6 * 384}')
    b('L_inner:')
    for nm, sr, unit in (('R', 5, ROW), ('C', 6, 384)):
        lo, hi = c.new('lo' + nm), c.new('hi' + nm)
        b(f's_mul_i32 {sa}, s{sr}, {507 * unit}')
        b(f's_mul_i32 {sb}, s{sr}, {-4 * unit}')
        b(f'v_mov_b32 {lo}, {sa}')
        b(f'v_mov_b32 {hi}, {sb}')
        b(f's_add_u32 s{S_TOK48}, s{S_TOK48}, {sb}')


def wrap(b, edge, tok, regs):
    if not edge:
        return
    r, x = rowcol(b, tok)
    b(f'v_cmp_gt_u32 vcc, 4, {r}')
    b(f'v_cndmask_b32 {r}, %hiR, %loR, vcc')
    b(f'v_cmp_gt_u32 vcc, 4, {x}')
    b(f'v_cndmask_b32 {x}, %hiC, %loC, vcc')
    for reg in regs:
        b(f'v_add3_u32 v{reg}, v{reg}, {r}, {x}')


def x_piece(b, edge, i):
    c = b.ctx
    q, tok, f = uniq(c, 't'), uniq(c, 't'), uniq(c, 't')
    if i:
        b(f'v_add_u32 {q}, {256 * i}, %tid')
    b(f'v_mul_u32_u24 {tok}, 2731, {q if i else "%tid"}')
    b(f'v_bfe_u32 {f}, {tok}, 17, 3')
    b(f'v_lshrrev_b32 {tok}, 16, {tok}')
    b(f'v_xor_b32 {q}, {f}, {q if i else "%tid"}')
    b(f'v_mul_u32_u24 {f}, 37, {tok}')
    b(f'v_lshrrev_b32 {f}, 8, {f}')
    b(f'v_lshlrev_b32 {q}, 4, {q}')
    b(f'v_mad_u32_u24 v{V_DMA + i}, {f}, s{S_GAP}, {q}')
    wrap(b, edge, tok, [V_DMA + i])
    if i == 4:
        b(f'v_cmp_gt_u32 vcc, 48, {tok}')
        b(f'v_cndmask_b32 v{V_DMA + 4}, %big, v{V_DMA + 4}, vcc')
    return tok, q


def first_x(b, edge):
    c, big = b.ctx, '%big'
    b(f's_mov_b32 s{S_GAP}, {RGAP}')
    walk_setup(b, edge)
    b(f's_bfm_b32 s{S_T0}, s{S_NP}, 0')
    b('s_and_b32 s4, s2, 7')
    b('s_sub_u32 s4, 0, s4')
    for i in range(3):
        tok, q = x_piece(b, edge, i)
        off, f = c.new(f'xe{i}a'), uniq(c, 't')
        slot_off(b, tok, off, big, f's{S_T0}', 's4' if i else None)
        b(f'v_mul_u32_u24 {f}, 384, {tok}')
        b(f'v_sub_u32 {f}, {q}, {f}')
        b(f'v_add_u32 {off}, {off}, {f}')
    b(f's_lshl_b32 s{S_M0A}, s{S_H}, 10')
    b(f's_add_u32 s{S_M0A}, s{S_M0A}, {L_X}')


def build_entry(ctx, cfg, edge):
    b = Block(ctx, 'entry')
    c = ctx
    fl = cfg['ld_flags']
    srds = ((S_SRDX, 0, NBYTES), (SW, 8, 31 * 1152 + 384), (SO, 16, 73728), (S1, 32, 64), (S2, 40, 128), (SR, 48, 676), (S_SRDO, 72, 0))
    if not edge:
        pa = c.new('pa', 2)
        A = cfg['pf_all']
        b(f's_mov_b32 s{S_FORCE}, 0')
        b('L_again:')
        b(f's_load_dwordx16 s[{S_ARG}:{S_ARG + 15}], s[0:1], 0')
        b(f'v_readfirstlane_b32 s{S_H}, v0')
        b('s_cmp_ge_u32 s2, 256')
        b('s_cbranch_scc1 L_done')
        b(f's_lshr_b32 s{S_H}, s{S_H}, 6')
        b('s_cbranch_scc1 L_nopf')
        b('s_getpc_b64 s[96:97]')
        b(f's_bfe_u32 s3, s2, {hex(cfg["pf_bits"] << 16 | 3)}')
        b(f's_mul_i32 s3, s3, {64 - A}')
        b(f'v_cmp_gt_u32 vcc, {A}, v0')
        b(f'v_add_u32 {pa}.0, s3, v0')
        b(f'v_mov_b32 {pa}.1, 0')
        b(f'v_cndmask_b32 {pa}.0, {pa}.0, v0, vcc')
        b(f'v_lshlrev_b32 {pa}.0, 7, {pa}.0')
        b(f'v_lshl_add_u64 {pa}, s[96:97], 0, {pa}')
        b(f'global_load_dword a255, {pa}, off offset:992')
        b('L_nopf:')
        b(f's_max_u32 s3, s2, s{S_FORCE}')
        b('s_cmp_ge_u32 s3, 247')
        b('s_cbranch_scc1 L_edge')
    tid, l, g, cc, big = c.new('tid'), c.new('l'), c.new('g'), c.new('c'), c.new('big')
    b(f'v_mov_b32 {tid}, v0')
    b(f'v_mov_b32 {big}, 0x40000000')
    if cfg['start']['stouch']:
        b(f's_lshl_b32 s3, s{S_H}, 4')
        b('s_load_dwordx4 s[92:95], s[0:1], s3')
    wu = c.new('wu', 2)
    b(f'v_and_b32 {l}, 63, v0')
    b('s_bfe_u32 s3, s2, 0x50003')
    b(f's_lshl_b32 s4, s{S_H}, 3')
    b('s_lshr_b32 s98, 0x06143a01, s4')
    b('s_and_b32 s98, s98, 0xff')
    b('s_mul_i32 s3, s3, s98')
    b('s_sub_u32 s98, s98, 1')
    b('s_lshr_b32 s4, 0x0048d800, s4')
    b('s_and_b32 s4, s4, 0xff')
    b('s_lshl_b32 s4, s4, 3')
    b('s_max_u32 s4, s4, 6')
    b('s_sub_u32 s4, s4, s98')
    b('s_sub_u32 s4, s4, 1')
    b('s_min_u32 s3, s3, s4')
    b(f'v_min_u32 {wu}.0, s98, {l}')
    b(f'v_add_lshl_u32 {wu}.0, {wu}.0, s3, 7')
    b(f'v_mov_b32 {wu}.1, 0')
    b(f'v_lshrrev_b32 {g}, 4, {l}')
    b(f'v_and_b32 {cc}, 15, {l}')
    for srd, off, size in srds[:2]:
        b(f's_mov_b32 s{srd + 2}, {size}')
        b(f's_mov_b32 s{srd + 3}, 0x00020000')
    l16 = uniq(c, 't')
    b(f's_mul_i32 s3, s{S_H}, 96')
    b(f'v_lshl_add_u32 {l16}, {l}, 4, s3')
    for i in range(3):
        rho, k, ws = c.new(f'rho{i}'), uniq(c, 't'), c.new(f'ws{i}')
        if i:
            b(f'v_add_u32 {rho}, {64 * i}, {l}')
        b(f'v_mul_u32_u24 {rho}, 171, {rho if i else l}')
        b(f'v_lshrrev_b32 {rho}, 10, {rho}')
        b(f'v_lshrrev_b32 {k}, 1, {rho}')
        b(f'v_xor_b32 {k}, {k}, {rho}')
        b(f'v_and_b32 {k}, 4, {k}')
        b(f'v_mul_u32_u24 {k}, 3, {k}')
        b(f'v_xor_b32 {k}, {k}, {rho}')
        b(f'v_mul_u32_u24 {k}, 1152, {k}')
        b(f'v_mul_u32_u24 {ws}, 96, {rho}')
        b(f'v_sub_u32 {k}, {k}, {ws}')
        b(f'v_add_u32 {ws}, {l16}, {k}')
    b(f's_mul_i32 s{S_RING}, s{S_H}, 6144')
    b(f's_add_u32 s{S_RING + 1}, s{S_RING}, {TOG}')
    b(f's_cmp_eq_u32 s{S_H}, 3')
    b(f's_cselect_b32 s{S_RING}, {L_OE}, s{S_RING}')
    b(f's_cselect_b32 s{S_RING + 1}, {L_OE + 6144}, s{S_RING + 1}')
    late = not edge and cfg['start']['x0_at'] >= 0
    if not late:
        first_x(b, edge)
    b('s_waitcnt lgkmcnt(0)')
    if cfg['start']['stouch']:
        b('s_load_dword s101, s[92:93], 0')
        b('s_load_dword s101, s[94:95], 0')
    ptr = lambda off: f's[{S_ARG + off // 4}:{S_ARG + off // 4 + 1}]'
    for i, (w, off) in enumerate(((2, 16), (3, 48))):
        b(f's_cmp_eq_u32 s{S_H}, {w}')
        b(f's_cselect_b64 s[98:99], {ptr(off)}, ' + (ptr(8) if i == 0 else 's[98:99]'))
    b(f's_mov_b64 s[{S_SRDX}:{S_SRDX + 1}], {ptr(0)}')
    b(f'v_lshl_add_u64 {wu}, s[98:99], 0, {wu}')
    b(f's_cmp_eq_u32 s{S_H}, 2')
    b(f's_cselect_b64 s[98:99], {ptr(32)}, {ptr(24)}')
    b(f's_cmp_eq_u32 s{S_H}, 3')
    b(f's_cselect_b64 s[98:99], {ptr(40)}, s[98:99]')
    b(f'v_writelane_b32 {wu}.0, s98, 63')
    b(f'v_writelane_b32 {wu}.1, s99, 63')

    def warm():
        lab = 'L_nowu' + ('e' if edge else '')
        b(f's_cmp_eq_u32 s{S_H}, 0')
        b(f's_cbranch_scc1 {lab}')
        b(f'global_load_dword a254, {wu}, off')
        b(lab + ':')

    order = cfg['start']['order']
    for i in range(5):
        if i == order:
            warm()
        if not late:
            b(f's_add_u32 m0, s{S_M0A}, {L_XE - L_X + 4096 * i if i < 3 else 4096 * (i - 3)}')
            src = f'%xe{i}a, s[{S_SRDX}:{S_SRDX + 3}], 0' if i < 3 else f'v{V_DMA + i - 3}, s[{S_SRDX}:{S_SRDX + 3}], s{S_OFF + 2}'
            b(f'buffer_load_dwordx4 {src} offen{"" if i in (1, 2) else fl} lds')
    for srd, off, size in srds[1:-1] + ((S_LS, 24, 0),):
        b(f's_mov_b64 s[{srd}:{srd + 1}], {ptr(off)}')
    b(f's_load_dwordx4 s[{S_PO}:{S_PO + 3}], s[0:1], 72')
    return b


def build_start(ctx, cfg, edge):
    b = Block(ctx, 'start', lds_lat=cfg['start'].get('lds_lat', 112))
    b.auto_vm = b.free_scc = True
    P = cfg['start']
    b.gap_dma, b.gap_ld, b.vm_lat, b.vm_first, b.vm_rate = P['gap_dma'], P['gap_ld'], P['vm_lat'], P['vm_first'], P['vm_rate']
    b.fifo, b.limit, b.fifo_used, b.burst = P['fifo'], P['limit'], P['fifo_used'], P['burst']
    b.vm_entry = P['hold']
    c = ctx
    l, g, cc, big = '%l', '%g', '%c', '%big'
    T = lambda: uniq(c, 't')
    sreg = [S_FIRST]

    def SG():
        sreg[0] += 1
        assert sreg[0] <= 100
        return f's{sreg[0] - 1}'

    def smad(mul, add):
        s = SG()
        b(f's_mul_i32 {s}, s{S_H}, {mul}')
        if add:
            b(f's_add_u32 {s}, {s}, {add}')
        return s

    fl = cfg['ld_flags']
    DP = -5000
    spans = []

    def mark(k):
        spans.append((k, len(b.ins)))

    def dma_group(lds, soff, regs, srd, after=(), flags='', lat=None):
        b(f's_add_u32 m0, {lds[0]}, {lds[1]}', prio=DP)
        if soff[1]:
            b(f's_add_u32 s4, {soff[0]}, {soff[1]}', prio=DP)
        so = 's4' if soff[1] else soff[0]
        out = []
        for i, r in enumerate(regs):
            off = f' offset:{1024 * i}' if i else ''
            out.append(b(f'buffer_load_dwordx4 {r}, s[{srd}:{srd + 3}], {so} offen{off}{flags} lds', after=after, prio=DP, lat=lat))
        return out

    def xdma(pieces, tog, soff, after=(), lat=None):
        out = []
        for i in pieces:
            lds = (f's{S_M0A}', 4096 * i + (TOG if tog else 0)) if i < 4 else (s5b if tog else f's{S_M0B}', 0)
            out += dma_group(lds, (f's{soff}', 0), [f'v{V_DMA + i}'], S_SRDX, after, fl, lat)
        return out

    b.cur = -4000
    for srd, size in ((SO, 32 * 384), (S1, 64), (S2, 128), (SR, 676), (S_SRDO, 0)):
        b(f's_mov_b32 s{srd + 2}, {size}')
        b(f's_mov_b32 s{srd + 3}, 0x00020000')
    b.cur = -950
    sa1, sa2, sa3 = c.new('sa1'), c.new('sa2'), c.new('sa3')
    b(f'v_lshlrev_b32 {sa1}, 1, {l}')
    b(f'v_mul_u32_u24 {sa2}, 12, {cc}')
    b(f'v_add_u32 {sa2}, {smad(192, 0)}, {sa2}')
    b(f'v_lshlrev_b32 {sa3}, 5, {g}')
    ws = [f'%ws{i}' for i in range(3)]
    wso = [c.new(f'wso{i}') for i in range(3)]
    wtr, wor = [c.new(f'wtr{k}') for k in range(4)], [[T(), T()], [T(), T()]]
    s_qke, s_ve = smad(QKE_H, L_QKE), smad(VE_H, L_VE)
    b(f's_cmp_eq_u32 s{S_H}, 3')
    b(f's_cselect_b32 {s_ve}, {L_VE3}, {s_ve}')
    ring = [f's{S_RING}', f's{S_RING + 1}', s_qke, s_ve]
    pair_of = lambda n: n // 2 if n < 8 else (n % RING) // 2
    AHEAD = 8
    chunks = [(m, s) for m in (1, 0, 2, 3) for s in range(6)]
    ch_ld, ch_rd = {}, {}
    at = {SW: 0, SO: 0}
    half = {}
    for p in range(4):
        half[3 * p], half[3 * p + 1] = (p, 0), (p, 1)
        half[3 * p + 2] = (4 + p // 2, p & 1)

    def wo_pair(t, jc):
        bank, r = wo_reg(jc, half[t][0])
        return bank, r + 2 * half[t][1]

    def late_x():
        for i in range(3, 5):
            x_piece(b, edge, i)
        s5 = SG()
        b(f's_add_u32 {s5}, s{S_M0A}, 16384')
        b(f's_cmp_lt_u32 s{S_H}, 2')
        b(f's_cselect_b32 s{S_M0B}, {s5}, {L_DUM}')
        b(f's_cselect_b32 s{S_M0T}, {TOG}, 0')
        b(f's_xor_b32 {s5b}, s{S_M0B}, s{S_M0T}')

    def issue_chunk(n, after=()):
        m, s = chunks[n]
        lds = (ring[pair_of(n)], (n & 1) * 3072)
        srd, off = (SW, m * 384 + s * 32 * 1152) if m < 3 else (SO, s * 32 * 384)
        d = off - at[srd]
        at[srd] = off
        if d:
            b(f's_{"add" if d > 0 else "sub"}_u32 s{srd}, s{srd}, {abs(d)}', prio=DP)
            b(f's_{"addc" if d > 0 else "subb"}_u32 s{srd + 1}, s{srd + 1}, 0', prio=DP)
        ch_ld[n] = dma_group(lds, ('0', 0), ws if m < 3 else wso, srd, after)

    def read_chunk(n):
        m, s = chunks[n]
        pair, off = pair_of(n), (n & 1) * 3072
        ch_rd[n] = []
        for jd in range(3):
            for u in range(2):
                if m < 3:
                    base = 72 * m + (jd * 6 + s) * 4 + 2 * u
                    text = f'ds_read_b64_tr_b16 a[{base}:{base + 1}], {wtr[pair]} offset:{off + u * 768 + 32 * jd}'
                else:
                    bank, r = wo_pair(2 * s + u, jd)
                    text = f'ds_read_b64 {bank}[{r}:{r + 1}], {wor[pair][jd == 2]} offset:{off + u * 1536 + (8 if jd == 1 else 0)}'
                ch_rd[n].append(b(text, after=ch_ld[n], prio=-3000))

    x_rest, x_next, x_ld = [], [], []
    s5b = SG()
    x0_at = -1 if edge else P['x0_at']
    late_a = P.get('late_a', 0) if x0_at >= 0 else 0
    if x0_at >= 0:
        t = b.cur
        b.cur = -920
        first_x(b, edge)
        b.cur = t

    def xe_dma(lat):
        return [x for i in range(3) for x in dma_group((f's{S_M0A}', L_XE - L_X + 4096 * i), ('0', 0), [f'%xe{i}a'], S_SRDX,
                                                       flags='' if i else fl, lat=lat)]

    n_first = (2, 0, 2, 3)[late_a]
    ready_late = ((1, 2), (0, 1, 2), (1, 2, 3, 4), (2, 3, 4))[late_a]

    def x_first():
        if late_a < 2:
            x_ld.extend(xe_dma(P['x0_lat']))
        x_ld.extend(xdma(range(n_first), False, S_OFF + 2, lat=P['x0_lat']))

    def x_second():
        return (xe_dma(P['x_lat']) if late_a >= 2 else []) + xdma(range(n_first, 5), False, S_OFF + 2, lat=P['x_lat'])

    for n in range(AHEAD):
        if n == x0_at:
            x_first()
        if n == P['x_at']:
            late_x()
            x_rest = x_second()
        issue_chunk(n)
    if x0_at < 0:
        x_ld = x_rest[:1] if P['x_at'] == 0 else ch_ld[0][:1]
    w1, rc, w2a, w2b = c.new('w1', 2), c.new('rc', 4), c.new('w2a', 4), c.new('w2b', 4)
    sm_after = [ch_ld[P['small_after']][-1]]
    b(f'buffer_load_ushort {w1}.0, {sa1}, s[{S1}:{S1 + 3}], 0 offen', prio=DP - 1, after=sm_after)
    b(f'buffer_load_dwordx3 {rc}.0:2, {sa2}, s[{SR}:{SR + 3}], 0 offen', prio=DP - 1, after=sm_after)
    b(f'buffer_load_dwordx4 {w2a}, {sa3}, s[{S2}:{S2 + 3}], 0 offen', prio=DP - 1, after=sm_after)
    b(f'buffer_load_dwordx4 {w2b}, {sa3}, s[{S2}:{S2 + 3}], 0 offen offset:16', prio=DP - 1, after=sm_after)
    tau = c.new('tau')
    b(f'v_lshlrev_b32 {tau}, 1, {g}', prio=DP)
    b(f'global_load_ushort {tau}, {tau}, s[{S_LS}:{S_LS + 1}]', prio=DP - 1, after=sm_after)

    b.cur = -450
    mark(6)
    if P['x_at'] >= AHEAD:
        late_x()
    mark(None)
    s_gap = f's{S_GAP}'

    b.cur = -700
    c4, c3 = c.new('c4'), c.new('c3')
    b(f'v_lshrrev_b32 {c4}, 2, {cc}')
    b(f'v_and_b32 {c3}, 3, {cc}')
    t0, swz, c384 = T(), T(), T()
    b(f'v_lshrrev_b32 {swz}, 1, {cc}')
    b(f'v_xor_b32 {t0}, {swz}, {g}')
    b(f'v_mul_u32_u24 {c384}, 384, {cc}')
    b(f'v_lshl_add_u32 v{V_XA0}, {t0}, 4, {c384}')
    b(f'v_xor_b32 v{V_XA1}, 64, v{V_XA0}')
    t0 = T()
    b(f'v_and_b32 {t0}, 2, {g}')
    b(f'v_add_u32 {t0}, {t0}, {g}')
    b(f'v_lshl_add_u32 {t0}, {t0}, 2, {c4}')
    b(f'v_mul_u32_u24 {t0}, 96, {t0}')
    b(f'v_lshl_add_u32 {t0}, {c3}, 3, {t0}')
    for k in range(4):
        b(f'v_add_u32 {wtr[k]}, {ring[k]}, {t0}')
    for r in range(4):
        b(f'v_mov_b32 v{V_ONES + r}, 0x3f803f80')
    tw = c.new('tw')
    b(f'v_mul_u32_u24 {tw}, 768, {g}')
    b(f'v_add_u32 {tw}, {sa2}, {tw}')
    b(f'v_add_u32 {tw}, {L_TAB}, {tw}')
    s_lo = SG()
    b(f's_mov_b32 {s_lo}, 0x3f80')
    par, one, g16 = T(), T(), T()
    b(f'v_and_b32 {par}, 1, {cc}')
    b(f'v_lshlrev_b32 {par}, 4, {par}')
    b(f'v_lshlrev_b32 {one}, {par}, {s_lo}')
    b(f'v_cmp_gt_u32 vcc, 2, {c3}')
    for r in range(4):
        b(f'v_cndmask_b32 v{V_SEL + r}, ' + (f'{one}, 0' if r & 1 else f'0, {one}') + ', vcc')
    hone = T()
    b(f'v_mov_b32 {hone}, 0x3c003c00')
    for r in range(4):
        b(f'v_cmp_eq_u32 vcc, {r}, {c3}')
        b(f'v_cndmask_b32 v{V_SELH + r}, 0, {hone}, vcc')
    b(f'v_mov_b32 v{V_MX}, 1.0')
    eye = c.new('eye', 2)
    b(f'v_cmp_eq_u32 vcc, {g}, {c4}')
    b(f'v_cndmask_b32 {eye}.0, 0, v{V_SEL}, vcc')
    b(f'v_cndmask_b32 {eye}.1, 0, v{V_SEL + 1}, vcc')
    b(f'v_lshlrev_b32 {g16}, 4, {g}')
    b.cur = -300
    mark(3)
    s_main, s_tail = smad(64, 0), smad(32, 192)
    for i in range(3):
        pc, t0, t1 = T(), T(), T()
        b(f'v_mul_u32_u24 {t0}, 6, %rho{i}')
        b(f'v_sub_u32 {pc}, {l}, {t0}')
        b(f'v_mul_u32_u24 {t0}, 384, %rho{i}')
        b(f'v_lshl_add_u32 {t0}, {pc}, 4, {t0}')
        b(f'v_add_u32 {t1}, {s_tail}, {t0}')
        b(f'v_add_u32 {t0}, {s_main}, {t0}')
        b(f'v_cmp_gt_i32 vcc, {4 - 64 * i}, {pc}')
        b(f'v_cndmask_b32 {wso[i]}, {t1}, {t0}, vcc')
    c96 = T()
    b(f'v_mul_u32_u24 {c96}, 96, {cc}')
    for k in range(2):
        b(f'v_add3_u32 {wor[k][0]}, {c96}, {g16}, s{S_RING + k}')
        b(f'v_lshl_add_u32 {wor[k][1]}, {g}, 3, {c96}')
        b(f'v_add3_u32 {wor[k][1]}, {wor[k][1]}, 64, s{S_RING + k}')

    b.cur = -500
    mark(0)
    b(f's_mov_b32 s{S_J}, s{S_J0}')
    b(f's_mov_b32 s{S_OFF}, s{S_OFF + 2}')
    b(f's_mov_b32 s{S_OFF + 3}, 0')
    b(f's_mov_b32 s{S_OFF + 4}, 0')
    b(f's_mov_b32 s{S_IT}, 0')
    for k in range(2):
        b(f's_add_u32 s{S_J}, s{S_J}, s{S_DJ}')
        b(f's_add_u32 s{S_OFF}, s{S_OFF}, s{S_DOFF}')
        b(f's_cmp_ge_u32 s{S_J}, 72')
        b(f's_cselect_b32 s{S_T0}, 72, 0')
        b(f's_cselect_b32 s{S_T1}, s{S_DCAR}, 0')
        b(f's_sub_u32 s{S_J}, s{S_J}, s{S_T0}')
        b(f's_add_u32 s{S_OFF}, s{S_OFF}, s{S_T1}')
        if k == 0:
            b(f's_mov_b32 s{S_OFF + 1}, s{S_OFF}')
    mark(1)
    g4, g2 = T(), T()
    b(f'v_lshl_add_u32 {g4}, {g}, 4, {smad(64, 0)}')
    b(f'v_lshl_add_u32 {g2}, {g}, 3, {smad(32, 256)}')
    colr = []
    for j in range(3):
        tok, r, t0 = T(), T(), T()
        b(f'v_add_u32 {tok}, {16 * j}, {cc}')
        b(f'v_mul_u32_u24 {r}, 37, {tok}')
        b(f'v_mul_u32_u24 {t0}, 384, {tok}')
        b(f'v_lshrrev_b32 {r}, 8, {r}')
        b(f'v_mad_u32_u24 {t0}, {r}, {s_gap}, {t0}')
        b(f'v_add_u32 v{V_ST4 + j}, {t0}, {g4}')
        b(f'v_add_u32 v{V_ST2 + j}, {t0}, {g2}')
        wrap(b, edge, tok, [V_ST4 + j, V_ST2 + j])
        colr.append((tok, r))
    mark(4)
    s_tab = smad(768, L_TAB)
    aq = []
    gat = []
    for j in range(3):
        tok, r = colr[j]
        a, t0 = T(), T()
        b(f'v_mul_u32_u24 {t0}, 24, {r}')
        b(f'v_lshl_add_u32 {t0}, {tok}, 2, {t0}')
        b(f'v_add_u32 v{V_BEX + 2 * j}, {s_tab}, {t0}')
        b(f'v_sub_u32 v{V_BEX + 2 * j + 1}, {s_tab}, {t0}')
        b(f'v_sub_u32 {a}, v{V_BEX + 2 * j}, {g16}')
        aq.append(a)
        gat += [(f'v{V_BEX + 2 * j}', 0), (f'v{V_BEX + 2 * j + 1}', 672)]
    g148, s24 = T(), SG()
    b(f'v_mul_u32_u24 {g148}, 148, {g}')
    b(f's_mov_b32 {s24}, -24')
    for jk in range(3):
        for r in range(4):
            rk = T()
            b(f'v_add_u32 {rk}, {37 * (16 * jk + r)}, {g148}')
            b(f'v_lshrrev_b32 {rk}, 8, {rk}')
            for jq in range(3):
                reg = V_BIAS + (jq * 3 + jk) * 4 + r
                b(f'v_mad_i32_i24 v{reg}, {rk}, {s24}, {aq[jq]}')
                gat.append((f'v{reg}', 336 - 4 * (16 * jk + r)))
    bee = c.new('bee')
    b(f'v_mov_b32 {bee}, {s_tab}')
    gat.append((bee, 336))
    mark(2)
    l16 = T()
    b(f'v_lshlrev_b32 {l16}, 4, {l}')
    b(f'v_xor_b32 v{V_OR}, {TOG}, {l16}')
    b(f'v_lshl_add_u32 v{V_OW}, s{S_H}, 10, {l16}')
    sh, sl, st = SG(), SG(), SG()
    b(f's_lshr_b32 {sh}, s{S_H}, 1')
    b(f's_and_b32 {sl}, s{S_H}, 1')
    b(f's_lshl_b32 {sl}, {sl}, 3')
    b(f's_lshl_b32 {st}, {sh}, 10')
    b(f's_add_u32 {st}, {st}, {sl}')
    b(f'v_add_u32 v{V_OT}, {st}, {l16}')
    b(f's_lshl_b32 {sh}, {sh}, 11')
    b(f's_add_u32 {sh}, {sh}, {sl}')
    b(f's_add_u32 {sh}, {sh}, {L_OE + 4 * 2048}')
    t0, t1, t2 = T(), T(), T()
    b(f'v_lshl_add_u32 {t0}, {g}, 3, {smad(2048, L_OE)}')
    b(f'v_mov_b32 {t1}, {sh}')
    b(f'v_cmp_gt_u32 vcc, 2, {g}')
    b(f'v_cndmask_b32 {t0}, {t1}, {t0}, vcc')
    b(f'v_lshl_add_u32 {t0}, {c4}, 9, {t0}')
    b(f'v_lshl_add_u32 {t0}, {c3}, 1, {t0}')
    b(f'v_mov_b32 {t2}, {L_OED}')
    b(f'v_cmp_gt_u32 vcc, 3, {g}')
    b(f'v_cndmask_b32 v{V_OE}, {t2}, {t0}, vcc')
    g80 = T()
    b(f'v_mul_u32_u24 {g80}, 80, {g}')
    qke0 = f'v{V_QKE}' if edge else T()
    b(f'v_add3_u32 {qke0}, {g80}, {par}, {s_qke}')
    if not edge:
        b(f'v_add_u32 v{V_QKE}, {s_qke}, {g80}')
    b(f'v_lshl_add_u32 v{V_VE}, {cc}, 2, {s_ve}')
    s_pe = smad(128, L_PE)
    b(f'v_add_u32 v{V_PR}, {s_pe}, {g16}')
    t0 = T()
    b(f'v_lshrrev_b32 {t0}, 1, {g}')
    b(f'v_mul_u32_u24 {t0}, 48, {t0}')
    b(f'v_lshl_add_u32 {t0}, {g}, 3, {t0}')
    b(f'v_lshl_add_u32 {t0}, {c4}, 4, {t0}')
    b(f'v_lshl_add_u32 {t0}, {c3}, 1, {t0}')
    b(f'v_add_u32 v{V_PW}, {s_pe}, {t0}')
    for r in range(1, 4):
        b(f'v_mov_b32 v{V_P1 + r}, 0')
    b(f's_mov_b64 s[{S_PX}:{S_PX + 1}], s[{S_SRDX}:{S_SRDX + 1}]')
    b(f's_mov_b32 s{S_EPSQ}, {f32(0.25e-12)}')
    b(f's_mov_b32 s{S_EPSY}, {f32(192e-5 / 16)}')
    mark(None)
    xa0, xa1 = c.new('xea0'), c.new('xea1')
    b(f'v_add_u32 {xa0}, {L_XE}, v{V_XA0}')
    b(f'v_add_u32 {xa1}, {L_XE}, v{V_XA1}')
    mark(5)
    dum = T()
    b(f'v_lshlrev_b32 {dum}, 4, {cc}')
    b(f'v_add_u32 {dum}, {L_DUM}, {dum}')
    qw, ew, vw = [T(), T()], [T(), T()], [T(), T()]
    b(f'v_mul_u32_u24 {qw[0]}, {QKE_S}, {cc}')
    b(f'v_add3_u32 {qw[0]}, {qw[0]}, {g80}, {s_qke}')
    b(f'v_mul_u32_u24 {ew[0]}, {VE_S}, {cc}')
    b(f'v_add3_u32 {ew[0]}, {ew[0]}, {g16}, {s_ve}')
    b(f'v_mul_u32_u24 {vw[0]}, {4 * VE_S}, {g}')
    b(f'v_add_u32 {vw[0]}, {vw[0]}, v{V_VE}')
    b(f'v_add_u32 {qw[1]}, {16 * QKE_S}, {qw[0]}')
    b(f'v_add_u32 {ew[1]}, {16 * VE_S}, {ew[0]}')
    b(f'v_add_u32 {vw[1]}, {16 * VE_S}, {vw[0]}')
    b(f'v_cmp_gt_u32 vcc, {NSLOT - 16}, {cc}')
    b(f'v_cndmask_b32 {qw[1]}, {dum}, {qw[1]}, vcc')
    b(f'v_cndmask_b32 {ew[1]}, {dum}, {ew[1]}, vcc')
    b(f'v_cmp_gt_u32 vcc, {(NSLOT - 16) // 4}, {g}')
    b(f'v_cndmask_b32 {vw[1]}, {dum}, {vw[1]}, vcc')
    sreg[0] += sreg[0] & 1
    row0 = f's[{sreg[0]}:{sreg[0] + 1}]'
    sreg[0] += 2
    b(f'v_cmp_gt_u32 {row0}, 16, {l}')
    neg = c.new('neg')
    b(f'v_mov_b32 {neg}, {f32(NEG)}')

    mark(None)
    b.cur = -1600
    shift = T()
    b(f'v_lshlrev_b32 {tau}, 16, {tau}')
    b(f'v_max_f32 {tau}, {f32(-100.0)}, {tau}')
    b(f'v_min_f32 {tau}, {f32(4.59375)}, {tau}')
    b(f'v_mul_f32 {tau}, {f32(LOG2E)}, {tau}')
    b(f'v_exp_f32 {tau}, {tau}')
    b(f'{CVT} {tau}, {tau}, {tau}')
    b(f'v_and_b32 {tau}, 0xffff0000, {tau}')
    b(f'v_mul_f32 {tau}, {f32(LOG2E)}, {tau}')
    b(f'v_mul_f32 {shift}, {f32(-SHIFT_COS)}, {tau}')
    b(f'v_add_f32 {shift}, {f32(-8 * LOG2E)}, {shift}')
    b(f'v_readlane_b32 s{S_C}, {tau}, {smad(16, 0)}')

    b.cur = -1500
    b(f'v_mov_b32 {w1}.1, 0')
    w2, psel = c.new('w2', 2), T()
    sreg[0] += sreg[0] & 1
    upper = f's[{sreg[0]}:{sreg[0] + 1}]'
    sreg[0] += 2
    b(f'v_cmp_lt_u32 {upper}, 7, {cc}')
    b(f'v_and_b32 {psel}, 1, {c4}')
    b(f'v_mul_u32_u24 {psel}, 0x020202, {psel}')
    b(f'v_lshl_or_b32 {psel}, {psel}, 8, {psel}')
    b(f'v_add_u32 {psel}, 0x05040100, {psel}')
    for k, w in enumerate((w2a, w2b)):
        b(f'v_cndmask_b32 {w}.0, {w}.0, {w}.1, {upper}')
        b(f'v_cndmask_b32 {w}.2, {w}.2, {w}.3, {upper}')
        b(f'v_perm_b32 {w2}.{k}, {w}.2, {w}.0, {psel}')
    pub = []
    for t in range(3):
        rb = c.new(f'rb{t}', 2)
        b(f'v_bfe_u32 {rb}.0, {rc}.{t}, {g16}, 16')
        b(f'v_mov_b32 {rb}.1, 0')
        b(f'{M16} {c.new(f"hd{t}", 4)}, {w1}, {rb}, 0')
        for r in range(4):
            b(f'v_max_f32 %hd{t}.{r}, 0, %hd{t}.{r}')
        hp = c.new(f'hp{t}', 2)
        b(f'{CVT} {hp}.0, %hd{t}.0, %hd{t}.1')
        b(f'{CVT} {hp}.1, %hd{t}.2, %hd{t}.3')
        b(f'{M16} {c.new(f"z{t}", 4)}, {w2}, {hp}, 0')
        for fmt in (CVT + ' {0}, {0}, {0}', 'v_and_b32 {0}, 0xffff0000, {0}', f'v_mul_f32 {{0}}, {f32(-LOG2E)}, {{0}}', 'v_exp_f32 {0}, {0}',
                    'v_add_f32 {0}, 1.0, {0}', 'v_rcp_f32 {0}, {0}', CVT + ' {0}, {0}, {0}', 'v_and_b32 {0}, 0xffff0000, {0}',
                    f'v_fmamk_f32 {{0}}, {{0}}, {f32(16 * LOG2E)}, {shift}'):
            b(fmt.format(f'%z{t}.0'))
        pub.append(b(f'ds_write_b32 {tw}, %z{t}.0 offset:{4 * t}'))
    for n in range(AHEAD):
        read_chunk(n)
    for n in range(AHEAD, 25):
        if n == x0_at:
            x_first()
        if n == P['x_at']:
            x_rest = x_second()
        if n == min(24, P['x1_at']):
            b(f's_lshr_b32 s{S_SRDX + 2}, s{S_N}, 1', prio=DP)
            b(f's_cselect_b32 s{S_SRDX + 2}, s{S_NB}, 0', prio=DP)
            x_next = xdma(range(5), True, S_OFF + 1, lat=P['x1_lat'])
        if n < 24:
            issue_chunk(n, ch_rd[n - 8 if n < 12 else n - RING])
            read_chunk(n)
    freed = [x for n in range(4, 8) for x in ch_rd[n]]
    barr, pre = None, []
    if x0_at > 1:
        bar1 = b('s_barrier', after=pub)
        pre = [bar1]
    if not edge and P['xr_mode'] == 2:
        bar0 = barr = b('s_barrier', after=x_ld + x_rest + pre)
    else:
        bar0 = b('s_barrier', after=x_ld + pre)
        if not edge and P['xr_mode'] == 1:
            barr = b('s_barrier', after=x_rest + [bar0])
    barx = barr or bar0
    if not pre:
        bar1 = barx = b('s_barrier', after=pub + [barx])
    b.cur = P['gather']
    fin = []
    for reg, off in gat:
        fin.append(b(f'ds_read_b32 {reg}, {reg} offset:{off}', after=[bar1]))
    b(f'v_readfirstlane_b32 s{S_BEE}, {bee}')
    gate = []
    if edge:
        s_reg, m100 = SG(), T()
        b(f's_lshl_b32 {s_reg}, s5, 1')
        b(f's_or_b32 {s_reg}, {s_reg}, s6')
        b(f'v_mov_b32 {m100}, {f32(-100.0 * LOG2E)}')

        def region(tok):
            r, x = rowcol(b, tok)
            b(f'v_lshrrev_b32 {r}, 2, {r}')
            b(f'v_lshrrev_b32 {x}, 2, {x}')
            b(f'v_and_b32 {r}, s5, {r}')
            b(f'v_and_b32 {x}, s6, {x}')
            b(f'v_lshl_or_b32 {r}, {r}, 1, {x}')
            return r

        def mask(reg, ra, rb):
            t = T()
            b(f'v_cmp_ne_u32 vcc, {rb}, {ra}')
            b(f'v_cndmask_b32 {t}, 0, {m100}, vcc')
            gate.append(b(f'v_add_f32 v{reg}, v{reg}, {t}'))

        rq = [region(colr[j][0]) for j in range(3)]
        for j in range(3):
            mask(V_BEX + 2 * j, rq[j], s_reg)
            mask(V_BEX + 2 * j + 1, rq[j], s_reg)
        for jk in range(3):
            for r in range(4):
                tok = T()
                b(f'v_lshl_add_u32 {tok}, {g}, 2, {16 * jk + r}', after=[fin[-1]])
                rk = region(tok)
                for jq in range(3):
                    mask(V_BIAS + (jq * 3 + jk) * 4 + r, rq[jq], rk)
    for j in range(3):
        b(f'v_cndmask_b32 v{V_BEX + 2 * j}, {neg}, v{V_BEX + 2 * j}, {row0}')
        if j:
            b(f'v_mov_b32_dpp v{V_BEX + 1}, v{V_BEX + 2 * j + 1} quad_perm:[0,1,2,3] row_mask:{hex(1 << j)} bank_mask:0xf')

    zero = c.new('zero', 4)
    mf, rec, xe_rd = [], [], []
    b.cur = 0

    def frags(name, j, base, addr):
        out = []
        for s in range(6):
            aft = [mf[len(mf) + s - P['lead']]] if len(mf) >= P['lead'] else gate
            out.append(xread(b, f'{name}{s}', j, s, base, addr=addr, after=[bar0] + aft, prio=-500))
        return out

    def part(nm, w, j, sfx, xf):
        for jd in range(3):
            mf.extend(proj_chain(b, f'{nm}a{j}{jd}{sfx}', w, lambda s: f'%{xf}{s}', jd, nm == 'v'))
        if nm != 'v':
            sumsq(b, f'ss{nm}{j}{sfx}', [f'{nm}a{j}{jd}{sfx}' for jd in range(3)], f's{S_EPSQ}')

    def qk_record(j):
        qk_norm(b, j, 'e')
        qk_pack(b, j, 'e')
        ee, et = c.new(f'ee{j}', 4), T()
        for jd in range(3):
            for r in range(4):
                op = 'v_mul_f32' if jd == 0 and r == 0 else 'v_fmac_f32'
                b(f'{op} {ee}.0, %qa{j}{jd}e.{r}, %ka{j}{jd}e.{r}')
        for op in ('v_permlane32_swap_b32', 'v_permlane16_swap_b32'):
            b(f'v_mov_b32 {et}, {ee}.0')
            b(f'{op} {ee}.0, {et}')
            b(f'v_add_f32 {ee}.0, {ee}.0, {et}')
        x = b(f'v_add_f32 {ee}.0, s{S_BEE}, {ee}.0')
        for r in range(1, 4):
            b(f'v_mov_b32 {ee}.{r}, {neg}', after=[x])
        b(f'v_cndmask_b32 {ee}.0, {neg}, {ee}.0, {row0}')
        for text in (f'ds_write_b128 {qw[j]}, %kp{j}e', f'ds_write_b64 {qw[j]}, %tp{j}e.4:5 offset:48',
                     f'ds_write_b128 {qw[j]}, %qp{j}e offset:32', f'ds_write_b64 {qw[j]}, %tp{j}e.2:3 offset:72',
                     f'ds_write_b128 {ew[j]}, {ee} offset:192'):
            rec.append(b(text, after=freed))

    def v_record(j):
        for jd in range(3):
            for r in range(4):
                x = f'%va{j}{jd}e.{r}'
                b(f'{CVT} {x}, {x}, {x}')
            for r in (0, 2):
                o = (VE_S * r + 64 * jd) // 4
                rec.append(b(f'ds_write2_b32 {vw[j]}, %va{j}{jd}e.{r}, %va{j}{jd}e.{r + 1} offset0:{o} offset1:{o + VE_S // 4}', after=freed))

    for r in range(4):
        b(f'v_mov_b32 {zero}.{r}, 0', prio=-200, after=ch_rd[5][:1])
    for j in range(2):
        for text in (f'ds_write_b128 {qw[j]}, {zero} offset:16', f'ds_write_b64 {qw[j]}, {zero}.0:1 offset:56',
                     f'ds_write_b64 {qw[j]}, {zero}.0:1 offset:64'):
            rec.append(b(text, prio=-200, after=freed))
    XE = (xa0, xa1)
    tile0(c, edge)
    for jd in range(3):
        c.new(f'v0{jd}', 4)
        c.new(f'v1{jd}', 4)
    F = dict(dict(cfg, tail32=0, ow=0), **P['first'])
    if edge:
        xe_rd += frags('xe', 0, 0, XE)
        part('k', WK, 0, 'e', 'xe')
        xe_rd += frags('xg', 1, 0, XE)
        part('k', WK, 1, 'e', 'xg')
        part('q', WQ, 0, 'e', 'xe')
        qk_record(0)
        n0 = len(rec)
        part('q', WQ, 1, 'e', 'xg')
        qk_record(1)
        x0_rd = frags('xf0', 0, L_X, None)
        part('k', WK, 0, '', 'xf0')
        mf[-18].after.append(rec[n0 - P['hold0']])
        part('q', WQ, 0, '', 'xf0')
        mf[-18].after.append(rec[len(rec) - P['hold1']])
        qk_norm(b, 0)
        qk_pack(b, 0)
        part('v', WV, 0, '', 'xf0')
        for jd in range(3):
            scale_pack(b, f'va0{jd}', None, lambda e: f'%v0{jd}.{e}', 0)
        for j in range(2):
            xe_rd += frags('xh' if j else 'xi', j, 0, XE)
            part('v', WV, j, 'e', 'xh' if j else 'xi')
            v_record(j)
        bar2 = b('s_barrier', after=x_rest + fin + [barx, mf[-1]])
        x0_rd += later_tiles(b, F, True, mf, [bar2])
    else:
        bar2 = barx
        if not barr:
            barr = bar2 = b('s_barrier', after=x_rest + [barx])
        sreg[0] += sreg[0] & 1
        valid = f's[{sreg[0]}:{sreg[0] + 1}]'
        sreg[0] += 2
        t0, dw = T(), [T(), T()]
        b(f'v_add_u32 {t0}, 16, {cc}', prio=-250)
        b(f'v_cmp_gt_u32 {valid}, s{S_NP}, {t0}', prio=-250)
        negs = c.new('negs', 4)
        for r in range(4):
            b(f'v_mov_b32 {negs}.{r}, {neg}', prio=-200, after=ch_rd[5][:1])
        fill = []
        for j in range(2):
            b(f'v_cndmask_b32 {dw[j]}, {dum}, {ew[j]}, {row0}', prio=-250)
            fill.append(b(f'ds_write_b128 {ew[j]}, {negs} offset:192', prio=-200, after=freed))
        x0_rd, have, k = [], None, 0
        for nm, tl in P['seq']:
            ext = tl >= 3
            if tl != have:
                k += 1
                have, xf = tl, f'xs{k}_'
                lead = P['leads'][min(len(P['leads']) - 1, len(mf) // 90)]
                for s in range(6):
                    q = len(mf) + s - lead
                    aft = [barr if tl in ready_late else bar0] + ([mf[min(q, len(mf) - 1)]] if q >= 0 and mf else [])
                    r = xread(b, f'{xf}{s}', tl - 3 if ext else tl, s, 0 if ext else L_X, addr=XE if ext else None, after=aft, prio=-500)
                    (xe_rd if ext else x0_rd).append(r)
            sfx = 'e' if ext and nm == 'v' else ''
            j = tl - 3 if sfx else tl
            for jd in range(3):
                mf.extend(proj_chain(b, f'{nm}a{j}{jd}{sfx}', dict(q=WQ, k=WK, v=WV)[nm], lambda s: f'%{xf}{s}', jd, nm == 'v'))
            t = b.cur
            b.cur = t - P['post']
            if nm == 'v':
                if ext:
                    v_record(j)
                else:
                    for jd in range(3):
                        scale_pack(b, f'va{j}{jd}', None, lambda e: f'%v{j // 2}{jd}.{e}', 2 * (j & 1))
            else:
                half_raw(b, j, nm)
            if nm == 'q':
                if ext:
                    half_dot(b, j, 2, half_regs(c, j, 'q'), half_regs(c, j, 'k'))
                for r in range(3 if ext else 2, 4):
                    b(f'v_mov_b32 %nb{j}.{r}, 0', after=mf[-1:])
                half_norm(b, j)
                half_scale(b, j)
                if tl == 4:
                    for r in range(2):
                        b(f'v_cndmask_b32 %nr{j}.{r}, 1.0, %nr{j}.{r}, {valid}')
                half_check(b, j)
                if ext:
                    e, d = tl - 3, c.new(f'ed{tl}', 1)
                    b(f'v_mul_f32 {d}.0, %nr{j}.2, %rr{j}.0')
                    b(f'v_fma_f32 {d}.0, {d}.0, %nr{j}.1, s{S_BEE}')
                    rec.append(b(f'ds_write_b32 {dw[e]}, {d}.0 offset:192', after=[fill[e]]))
                    for text in (f'ds_write_b128 {qw[e]}, %kp{j}', f'ds_write_b64 {qw[e]}, %tp{j}.4:5 offset:48',
                                 f'ds_write_b128 {qw[e]}, %qp{j} offset:32', f'ds_write_b64 {qw[e]}, %tp{j}.2:3 offset:72'):
                        rec.append(b(text, after=freed))
            b.cur = t
    T1 = b.cur
    bare = b('s_barrier', after=xe_rd + fin + [bar2])
    for x in x_next:
        x.after.append(bare)

    b.cur = T1 + P['sum_prio']
    pw, pr, mw, mr = T(), T(), T(), T()
    x = b(f'v_xor_b32 {pr}, {TOG}, v{V_OR}', after=[ch_rd[16][0]])
    b(f'v_lshrrev_b32 {mw}, 2, {pr}')
    b(f'v_lshrrev_b32 {mr}, 8, {pr}')
    b(f'v_lshl_add_u32 {pw}, s{S_H}, 2, {pr}')
    b(f'v_add_u32 {mw}, {L_MEAN}, {mw}')
    b(f'v_lshlrev_b32 {mr}, 4, {mr}')
    b(f'v_add_u32 {mr}, {L_MEAN}, {mr}')
    blk = lambda t, jc: '{0}[{1}:{2}]'.format(wo_pair(t, jc)[0], wo_pair(t, jc)[1], wo_pair(t, jc)[1] + 1)
    hs = c.new('hs', 4)
    for r in range(4):
        b(f'v_or_b32 {hs}.{r}, v{V_SEL}, v{V_SEL + 1}', after=[ch_rd[16][0]])
        b(f'v_lshrrev_b32 {hs}.{r}, 16, {hs}.{r}' if r >= 2 else f'v_and_b32 {hs}.{r}, 0xffff, {hs}.{r}')
        b(f'v_lshl_or_b32 {hs}.{r}, {hs}.{r}, 16, {hs}.{r}')
    parts_ = []
    for p in (0, 1, 4, 2, 3, 5):
        d = c.new(f'ps{p}', 4)
        for jc in range(3):
            b(f'{M32} {d}, {hs}, {WO(jc, p)}, {d if jc else 0}')
    for k in range(3):
        m = c.new(f'pm{k}')
        for t in range(4 * k, 4 * k + 4):
            src = f'%ps{half[t][0]}.{half[t][1]}'
            if t & 3:
                b(f'v_mov_b32_dpp {m}, {src} quad_perm:[0,1,2,3] row_mask:{hex(1 << (t & 3))} bank_mask:0xf', prio=-150)
            else:
                b(f'v_mov_b32 {m}, {src}', prio=-150)
        parts_.append(b(f'ds_write_b32 {pw}, {m} offset:{L_PART[k]}'))
    bar3 = b('s_barrier', after=parts_ + [x for n in range(24) for x in ch_rd[n]] + [bare])
    means = []
    for k in range(3):
        d = c.new(f'pt{k}', 4)
        b(f'ds_read_b128 {d}, {pr} offset:{L_PART[k]}', after=[bar3], prio=-150)
        b(f'v_add_f32 {d}.0, {d}.0, {d}.1', prio=-150)
        b(f'v_add_f32 {d}.2, {d}.2, {d}.3', prio=-150)
        b(f'v_add_f32 {d}.0, {d}.0, {d}.2', prio=-150)
        b(f'v_mul_f32 {d}.0, {f32(-1 / 192)}, {d}.0', prio=-150)
        means.append(b(f'ds_write_b32 {mw}, {d}.0 offset:{256 * k}', prio=-150))
    wv = mf[len(mf) - P['m_at']]
    barm = b('s_barrier', after=x0_rd + x_next + [bar3, wv])
    advance(b, F, T1, barm)
    o_wr, marks = attention(b, F, edge, T1, mf, rec, [bar3], exm=qke0)
    b.cur = T1 + 100
    tm, cv = [], {}
    for t in range(12):
        mn = c.new(f'mn{t}', 4)
        aft = [means[t >> 2]] + ([cv[t - P['wo_lead']]] if t >= P['wo_lead'] else [])
        b(f'ds_read_b128 {mn}, {mr} offset:{64 * t}', after=aft, prio=-140)
        for jc in range(3):
            d = c.new(f'wr{t}_{jc}', 4)
            tm.append(b(f'{M16} {d}, {blk(t, jc)}, {eye}, {mn}'))
            bank, r = wo_pair(t, jc)
            pr_ = T1 + P['cv_prio']
            for k in range(2):
                if bank == 'v':
                    cv[t] = b(f'{CVT} v{r + k}, {d}.{2 * k}, {d}.{2 * k + 1}', prio=pr_)
                else:
                    b(f'{CVT} {d}.{2 * k}, {d}.{2 * k}, {d}.{2 * k + 1}', prio=pr_)
                    b(f'v_accvgpr_write_b32 a{r + k}, {d}.{2 * k}', prio=pr_)
    for r in (V_OR, V_OW, V_OT):
        b(f'v_xor_b32 v{r}, {TOG}, v{r}', prio=T1 + 300)
    b.cur = T1 + 150
    rd, ch = head_part(b, dict(cfg, cut=0) if edge else F, edge, after=[marks[P['h_at'] // 12][P['h_at'] % 12]] * 6)
    for r in rd:
        r.after.append(barm)
    mark(0)
    b(f's_mov_b32 s{S_IT}, 1')
    b(f's_sub_u32 s{S_POOL}, s{S_NP}, s{S_N}')
    b(f's_sub_u32 s{S_LAST}, s{S_N}, 1')
    b(f's_bfm_b32 s{S_MASK}, s{S_N}, 0')
    b(f's_mov_b32 s{S_SL}, 1')
    b(f's_mov_b32 s{S_SL + 1}, 2')
    b(f's_mov_b32 s{S_SL + 2}, 3')
    u0, u1 = f's{S_U}', f's{S_U + 1}'
    b(f's_and_b32 {u0}, s2, 0xf8')
    b(f's_add_u32 {u0}, {u0}, {247 * NFIX}')
    b(f's_mul_i32 {u1}, {u0}, 58255')
    b(f's_lshr_b32 {u1}, {u1}, 22')
    b(f's_mul_i32 s{S_JP}, {u1}, 72')
    b(f's_sub_u32 s{S_JP}, {u0}, s{S_JP}')
    b(f's_mul_i32 {u1}, {u1}, {7 * ROW}')
    b(f's_mul_i32 {u0}, s{S_JP}, 2688')
    b(f's_add_u32 {u0}, {u0}, {u1}')
    b(f's_add_u32 s{S_OFFP}, {u0}, {3 * ROW + 3 * 384}')
    mark(None)
    for (k, a), (_, e) in zip(spans, spans[1:]):
        d = P.get('defer', [0] * 7)[k] if k is not None else 0
        if d:
            for i in b.ins[a:e]:
                i.after.append(ch_rd[d - 1][0])
    b('s_barrier', after=o_wr + [barm])
    return b
```

```python
import json
import os
import sys
from start import *

NAME = 'standalone__window_attn_swin_v2__vision'
HERE = os.path.dirname(os.path.abspath(__file__))
L_MAX = 2.0 ** 80
RN_MAX = 4.0


def lane_parts(b):
    c = b.ctx
    l, g, cc = uniq(c, 'l'), uniq(c, 'g'), uniq(c, 'c')
    b(f'v_bfe_u32 {l}, v{V_OR}, 4, 6')
    b(f'v_lshrrev_b32 {g}, 4, {l}')
    b(f'v_and_b32 {cc}, 15, {l}')
    return l, g, cc


def build_drain(ctx, cfg):
    b = Block(ctx, 'drain', lds_lat=cfg['lds_lat'])
    c = ctx
    D = cfg['drain']
    b.gap_st = D['gap_st']
    b.auto_vm = True
    b.cadence = D['cadence']
    fl = cfg['st_flags']
    b.cur = 0
    b(f's_mov_b32 s{S_SRDO}, s{S_PO}')
    b(f's_mov_b32 s{S_SRDO + 1}, s{S_PO + 1}')
    b(f's_cmp_ge_u32 s{S_IT}, 2')
    b(f's_cselect_b32 s{S_SRDO + 2}, s{S_NB}, 0')
    b.cur = -10
    l, g, cc = lane_parts(b)
    oe, orn = c.new('oer'), c.new('orn')
    b(f'v_lshlrev_b32 {oe}, 9, {g}')
    b(f'v_lshl_add_u32 {oe}, {cc}, 4, {oe}')
    b(f'v_add_u32 {oe}, {L_OE}, {oe}')
    b(f'v_xor_b32 {orn}, {TOG}, v{V_OR}')
    dst, w4, w2, r4, r2 = c.new('dst'), c.new('w4'), c.new('w2'), c.new('r4'), c.new('r2')
    b(f's_mul_i32 s5, s{S_H}, {QKE_H}')
    b(f's_add_u32 s5, s5, {L_QKE}')
    b(f'v_bfe_u32 {dst}, {cc}, 1, 2')
    b(f'v_xor_b32 {dst}, {dst}, {g}')
    b(f'v_lshl_add_u32 {dst}, {cc}, 2, {dst}')
    b(f'v_lshl_add_u32 {w4}, {dst}, 4, s5')
    b(f'v_lshl_add_u32 {w2}, {dst}, 3, s5')
    b(f'v_lshl_add_u32 {r4}, {l}, 4, s5')
    b(f'v_lshl_add_u32 {r2}, {l}, 3, s5')
    b(f'v_lshlrev_b32 {dst}, 2, {dst}')
    adr = []
    for j in range(3):
        a4, a2 = c.new(f'a4{j}'), c.new(f'a2{j}')
        b(f'ds_permute_b32 {a4}, {dst}, v{V_ST4 + j}', prio=-300)
        b(f'ds_permute_b32 {a2}, {dst}, v{V_ST2 + j}', prio=-300)
        adr.append((a4, a2))
    b.cur = D['ea_prio']
    big, tk, ch = c.new('big'), c.new('tk'), c.new('ch')
    b(f'v_mov_b32 {big}, 0x40000000')
    b(f'v_lshrrev_b32 {tk}, 2, {l}')
    b(f'v_lshrrev_b32 {ch}, 3, {l}')
    b(f'v_xor_b32 {ch}, {ch}, {l}')
    b(f'v_and_b32 {ch}, 3, {ch}')
    b('s_and_b32 s6, s2, 7')
    b('s_sub_u32 s6, 0, s6')
    b(f's_lshl_b32 s3, s{S_H}, 6')
    b(f's_lshl_b32 s4, s{S_H}, 5')
    b(f's_add_u32 s4, s4, 256')
    for t in range(2):
        slot, off, a4, a2 = uniq(c, 'slot'), uniq(c, 'off'), c.new(f'e4{t}'), c.new(f'e2{t}')
        b(f'v_add_u32 {slot}, {16 * t}, {cc if t else tk}')
        slot_off(b, slot, off, big, f's{S_MASK}', 's6' if t else None)
        b(f'v_lshl_add_u32 {a4}, {g if t else ch}, 4, {off}')
        b(f'v_add_u32 {a4}, s3, {a4}')
        b(f'v_lshl_add_u32 {a2}, {g if t else ch}, 3, {off}')
        b(f'v_add_u32 {a2}, s4, {a2}')
        adr.append((a4, a2))

    def stats(name, addr, off, after=()):
        s0, s1, red = c.new(name + '0', 4), c.new(name + '1', 4), c.new(name + 'r', 4)
        b(f'ds_read_b128 {s0}, {addr} offset:{off}', prio=-600, after=after)
        b(f'ds_read_b128 {s1}, {addr} offset:{off + 1024}', prio=-600, after=after)
        b(f'{M32} {red}, {vr(V_SEL, 4)}, {s0}, 0', prio=-900)
        b(f'{M32} {red}, {vr(V_SEL, 4)}, {s1}, {red}', prio=-900)
        return red

    used = {}

    def finish(y, red, r, a, soff, name, slot, gap=None):
        rs = ln_scale(b, red, r, name + 's')
        if gap:
            for st in ln_finish(b, y, rs, a[0], a[1], soff, name, fl):
                st.gap = gap
            return
        p0, p1, q0, q1 = c.new(name + 'a', 4), c.new(name + 'b', 2), c.new(name + 'c', 4), c.new(name + 'd', 2)
        o = 1536 * slot
        for jc in range(2):
            scale_pack(b, y(jc), rs, lambda e: f'{p0}.{e}', 2 * jc)
        x = b(f'ds_write_b128 {w4}, {p0} offset:{o}', after=used.get(slot, []))
        ra = b(f'ds_read_b128 {q0}, {r4} offset:{o}', after=[x])
        b(f'buffer_store_dwordx4 {q0}, {a[0]}, s[{S_SRDO}:{S_SRDO + 3}], {soff} offen{fl}')
        scale_pack(b, y(2), rs, lambda e: f'{p1}.{e}', 0)
        x = b(f'ds_write_b64 {w2}, {p1} offset:{o + 1024}', after=used.get(slot, []))
        rb = b(f'ds_read_b64 {q1}, {r2} offset:{o + 1024}', after=[x])
        b(f'buffer_store_dwordx2 {q1}, {a[1]}, s[{S_SRDO}:{S_SRDO + 3}], {soff} offen{fl}')
        used[slot] = [ra, rb]

    red = stats('da', f'v{V_OR}', L_STAT)
    for j in range(3):
        b.cur = D['d1_prio'][j]
        if j < D['direct']:
            finish(lambda jc: f'y{j}{jc}', red, j, (f'v{V_ST4 + j}', f'v{V_ST2 + j}'), f's{S_OFF + 4}', f'dy{j}', j, 256)
        else:
            finish(lambda jc: f'y{j}{jc}', red, j, adr[j], f's{S_OFF + 4}', f'dy{j}', j)
    b(f's_mov_b32 s{S_SRDO + 2}, s{S_NB}')
    fa, fv, fr = c.new('fa'), c.new('fv'), c.new('fr', 4)
    b.cur = 30
    b(f'v_sub_u32 {fv}, {f32(RN_MAX)}, v{V_MX}')
    b(f'v_or_b32 {fv}, {fv}, v{V_MX}')
    b(f'v_lshl_add_u32 {fa}, s{S_H}, 2, {orn}')
    flag = b(f'ds_write_b32 {fa}, {fv} offset:{L_STAT}')
    mf = []
    prev = [flag]
    nrec = 0
    for stage, tiles in enumerate(D['stages']):
        for j in tiles:
            b.cur = len(mf)
            for p in range(6):
                t = c.new(f'df{j}{p}', 4)
                aft = [mf[len(mf) + p - D['lead']]] if mf else []
                if j < 3:
                    b(f'ds_read_b128 {t}, v{V_OR} offset:{L_O + j * 6144 + p * 1024}', after=aft, prio=-450)
                else:
                    b(f'ds_read_b128 {t}, {oe} offset:{p * 2048 + (j - 3) * 256}', after=aft, prio=-450)
            for jc in range(3):
                mf += proj_chain(b, f'z{j}{jc}', WO, lambda p: f'%df{j}{p}', jc, False)
            b.cur = 0
            sumsq(b, f'ssz{j}', [f'z{j}{jc}' for jc in range(3)], f's{S_EPSY}')
        groups = [[j for j in tiles if j < 3]] + [[j] for j in tiles if j >= 3]
        groups = [gr for gr in groups if gr]
        wr = []
        for k, gr in enumerate(groups):
            sp = c.new(f'dsp{stage}{k}', 2)
            e = (gr + gr[-1:] * 3)[:4]
            b(f'{CVT} {sp}.0, %ssz{e[0]}, %ssz{e[1]}')
            b(f'{CVT} {sp}.1, %ssz{e[2]}, %ssz{e[3]}')
            wr.append(b(f'ds_write_b64 v{V_OT}, {sp} offset:{L_O + 2048 * (nrec + k)}', prio=-500))
        bar = b('s_barrier', after=wr + prev)
        prev = [bar]
        if stage == 0:
            b(f'ds_read_b128 {fr}, {orn} offset:{L_STAT}', after=[bar], prio=400)
            b(f'v_or3_b32 {fr}.0, {fr}.0, {fr}.1, {fr}.2', prio=400)
            b(f'v_or_b32 {fr}.0, {fr}.0, {fr}.3', prio=400)
            b(f'v_cmp_gt_i32 s[46:47], 0, {fr}.0', prio=400)
        for k, gr in enumerate(groups):
            red = stats(f'db{stage}{k}', orn, L_O + 2048 * (nrec + k), after=[bar])
            b.cur = 100 + 10 * stage
            for r, j in enumerate(gr):
                finish(lambda jc: f'z{j}{jc}', red, r, adr[j], f's{S_OFF + 3}' if j < 3 else '0', f'ey{j}', (j + 3) % 5, 112 if j == 4 else None)
        nrec += len(groups)
    return b


def build_final(ctx, cfg, safe):
    b = Block(ctx, 'final', lds_lat=cfg['final']['lds_lat'])
    c = ctx
    D = cfg['final']
    cfg = dict(cfg, **D['over'])
    b.gap_st, b.auto_vm, b.free_scc, b.cadence, b.limit = D['gap_st'], True, True, D['cadence'], D['limit']
    fl = cfg['st_flags']
    b.cur = -20
    b(f's_mov_b32 s{S_SRDO}, s{S_PO}')
    b(f's_mov_b32 s{S_SRDO + 1}, s{S_PO + 1}')
    b(f's_mov_b32 s{S_SRDO + 2}, s{S_NB}')
    srd = dict(y=48, u=52, z=56, e=S_SRDO)
    for k, w in enumerate('yuz'):
        point(b, srd[w], S_PO, S_OFF + 4 - k)
        b(f's_mov_b32 s{srd[w] + 3}, 0x00020000')
    b.cur = D['adr_prio'][0]
    l, g, cc = lane_parts(b)
    oe, orn, sr, sw = c.new('oer'), c.new('orn'), c.new('sr'), c.new('sw')
    b(f'v_lshlrev_b32 {oe}, 9, {g}')
    b(f'v_lshl_add_u32 {oe}, {cc}, 4, {oe}')
    b(f'v_add_u32 {oe}, {L_OE}, {oe}')
    b(f'v_and_b32 {sr}, 0xffff, v{V_OR}')
    b(f'v_add_u32 {sr}, {L_VE}, {sr}')
    b(f'v_and_b32 {sw}, 0xffff, v{V_OT}')
    b(f'v_add_u32 {sw}, {L_VE}, {sw}')
    b.cur = D['adr_prio'][1]
    big = c.new('big')
    b(f'v_mov_b32 {big}, 0x40000000')
    b('s_and_b32 s6, s2, 7')
    b('s_sub_u32 s6, 0, s6')
    b(f's_lshl_b32 s3, s{S_H}, 6')
    b(f's_lshl_b32 s4, s{S_H}, 5')
    b(f's_add_u32 s4, s4, 256')
    direct = {j: (f'v{V_ST4 + j}', f'v{V_ST2 + j}') for j in range(3)}
    for t in range(2):
        b.cur = D['adr_prio'][1 + t]
        slot, off, a4, a2 = uniq(c, 'slot'), uniq(c, 'off'), c.new(f'e4{t}'), c.new(f'e2{t}')
        b(f'v_add_u32 {slot}, {16 * t}, {cc}')
        slot_off(b, slot, off, big, f's{S_MASK}', 's6' if t else None)
        b(f'v_lshl_add_u32 {a4}, {g}, 4, {off}')
        b(f'v_add_u32 {a4}, s3, {a4}')
        b(f'v_lshl_add_u32 {a2}, {g}, 3, {off}')
        b(f'v_add_u32 {a2}, s4, {a2}')
        direct[3 + t] = (a4, a2)
    b.cur = D['adr_prio'][3]
    b(f'v_xor_b32 {orn}, {TOG}, v{V_OR}')
    dst, w4, w2, r4, r2 = c.new('dst'), c.new('w4'), c.new('w2'), c.new('r4'), c.new('r2')
    b(f's_mul_i32 s5, s{S_H}, {QKE_H}')
    b(f's_add_u32 s5, s5, {L_QKE}')
    b(f'v_bfe_u32 {dst}, {cc}, 1, 2')
    b(f'v_xor_b32 {dst}, {dst}, {g}')
    b(f'v_lshl_add_u32 {dst}, {cc}, 2, {dst}')
    b(f'v_lshl_add_u32 {w4}, {dst}, 4, s5')
    b(f'v_lshl_add_u32 {w2}, {dst}, 3, s5')
    b(f'v_lshl_add_u32 {r4}, {l}, 4, s5')
    b(f'v_lshl_add_u32 {r2}, {l}, 3, s5')
    b(f'v_lshlrev_b32 {dst}, 2, {dst}')
    perm = {}
    for j in sorted({int(t[1]) for t in D['via_lds']}):
        a4, a2 = c.new(f'a4{j}'), c.new(f'a2{j}')
        b(f'ds_permute_b32 {a4}, {dst}, v{V_ST4 + j}')
        b(f'ds_permute_b32 {a2}, {dst}, v{V_ST2 + j}')
        perm[j] = (a4, a2)

    def stats(name, addr, off, after=()):
        s0, s1, red = c.new(name + '0', 4), c.new(name + '1', 4), c.new(name + 'r', 4)
        b(f'ds_read_b128 {s0}, {addr} offset:{off}', prio=-600, after=after)
        b(f'ds_read_b128 {s1}, {addr} offset:{off + 1024}', prio=-600, after=after)
        b(f'{M32} {red}, {vr(V_SEL, 4)}, {s0}, 0', prio=-900)
        b(f'{M32} {red}, {vr(V_SEL, 4)}, {s1}, {red}', prio=-900)
        return red

    used = {}

    def finish(t, red, r):
        b.cur = D['fin_prio'][t]
        j = int(t[1]) + (3 if t[0] == 'e' else 0)
        R = srd[t[0]]
        y = lambda jc: f'{t}{jc}'
        rs = ln_scale(b, red, r, f'f{t}s')
        if t not in D['via_lds']:
            for st in ln_finish(b, y, rs, *direct[j], '0', f'f{t}', fl, R):
                st.gap = 128 if t == 'e1' else 256
            return
        p0, p1, q0, q1 = (c.new(f'f{t}{k}', n) for k, n in zip('abcd', (4, 2, 4, 2)))
        o = 1536 * j
        for jc in range(2):
            scale_pack(b, y(jc), rs, lambda e: f'{p0}.{e}', 2 * jc)
        x = b(f'ds_write_b128 {w4}, {p0} offset:{o}', after=used.get(j, []))
        ra = b(f'ds_read_b128 {q0}, {r4} offset:{o}', after=[x])
        b(f'buffer_store_dwordx4 {q0}, {perm[j][0]}, s[{R}:{R + 3}], 0 offen{fl}')
        scale_pack(b, y(2), rs, lambda e: f'{p1}.{e}', 0)
        x = b(f'ds_write_b64 {w2}, {p1} offset:{o + 1024}', after=used.get(j, []))
        rb = b(f'ds_read_b64 {q1}, {r2} offset:{o + 1024}', after=[x])
        b(f'buffer_store_dwordx2 {q1}, {perm[j][1]}, s[{R}:{R + 3}], 0 offen{fl}')
        used[j] = [ra, rb]

    om = []

    def project(t, after):
        j = int(t[1])
        for p in range(6):
            f = c.new(f'o{t}{p}', 4)
            aft = list(after) + ([om[len(om) + p - D['lead']]] if om else [])
            if t[0] == 'e':
                b(f'ds_read_b128 {f}, {oe} offset:{p * 2048 + j * 256}', after=aft, prio=-450)
            else:
                b(f'ds_read_b128 {f}, {f"v{V_OR}" if t[0] == "u" else orn} offset:{L_O + j * 6144 + p * 1024}', after=aft, prio=-450)
        b.cur = D['out_prio'][t]
        for jc in range(3):
            om.extend(proj_chain(b, f'{t}{jc}', WO, lambda p: f'%o{t}{p}', jc, False, step=0.01))
        b.cur = D['ss_prio'][t]
        sumsq(b, f'ss{t}', [f'{t}{jc}' for jc in range(3)], f's{S_EPSY}')

    red = stats('sy', f'v{V_OR}', L_STAT)
    for j in range(3):
        finish(f'y{j}', red, j)
    mf = []
    front_part(b, cfg, safe, mf)
    later_tiles(b, cfg, safe, mf)
    T1 = b.cur
    assert not cfg['exm']
    o_wr, marks = attention(b, cfg, safe, T1, mf, step=None)
    fa, fv, fr = c.new('fa'), c.new('fv'), c.new('fr', 4)
    b.cur = T1
    b(f'v_sub_u32 {fv}, {f32(RN_MAX)}, v{V_MX}')
    b(f'v_or_b32 {fv}, {fv}, v{V_MX}')
    if not safe:
        b(f'v_sub_u32 {fa}, {f32(L_MAX)}, v{V_ML}')
        b(f'v_or3_b32 {fv}, {fv}, {fa}, v{V_ML}')
    b(f'v_lshl_add_u32 {fa}, s{S_H}, 2, {orn}')
    flag = b(f'ds_write_b32 {fa}, {fv} offset:{L_STAT}')
    for k, t in enumerate(D['early']):
        project(t, [mf[min(len(mf) - 1, D['early_at'][k])]])
    prev, nrec = [], 0
    rec_at = lambda n: (n % 6) // 2 * VE_H + (n & 1) * 2048
    for k, (pub, tiles) in enumerate(D['steps']):
        wr = [x for j in pub for x in marks['w', j]]
        groups = [gr for gr in ([t for t in tiles if t != 'e1'], [t for t in tiles if t == 'e1']) if gr]
        for q, grp in enumerate(groups):
            sp = c.new(f'fsp{k}{q}', 2)
            e = (grp + grp[-1:] * 3)[:4]
            b.cur = D['ss_prio'][grp[-1]]
            b(f'{CVT} {sp}.0, %ss{e[0]}, %ss{e[1]}')
            b(f'{CVT} {sp}.1, %ss{e[2]}, %ss{e[3]}')
            wr.append(b(f'ds_write_b64 {sw}, {sp} offset:{rec_at(nrec + q)}', prio=-500))
        last = k == len(D['steps']) - 1
        bar = b('s_barrier', after=wr + prev + ([flag] if last else []))
        prev = [bar]
        for j in pub:
            project(f'z{j}' if j < 3 else 'e1', [bar])
        for q, grp in enumerate(groups):
            red = stats(f'sg{k}{q}', sr, rec_at(nrec), after=[bar])
            nrec += 1
            for r, t in enumerate(grp):
                finish(t, red, r)
        if last:
            b(f'ds_read_b128 {fr}, {orn} offset:{L_STAT}', after=[bar], prio=-590)
            b(f'v_or3_b32 {fr}.0, {fr}.0, {fr}.1, {fr}.2', prio=-590)
            b(f'v_or_b32 {fr}.0, {fr}.0, {fr}.3', prio=-590)
            b(f'v_cmp_gt_i32 s[46:47], 0, {fr}.0', prio=-590)
    return b


def keys_of(ctx, names):
    return [('%', n, e) for n in names for e in range(ctx.size[n])]


START = dict(gap_dma=72, gap_ld=16, vm_lat=500, vm_first=1200, vm_rate=68, fifo=10, fifo_used=1, x0_at=2, x0_lat=2200, tab_first=0, burst=9, stouch=1, order=0, hold=900, gather=-400, small_after=1, lead=9,
             x_at=18, x_lat=1800, x1_at=24, x1_lat=1800, wo_lead=2, early=1, hold0=3, hold1=5, sum_prio=-200, m_at=1,
             cv_prio=30, h_at=26, limit=116, first=dict(lead=9))
START_FAST = json.load(open(f'{HERE}/cfg_start.json'))


def load_cfg(tag, over):
    cfg = dict(CFG, trim=1, pf_all=20, pf_bits=3, start=START_FAST,
               drain=dict(gap_st=80, ea_prio=60, lead=10, stages=[[0, 1], [2, 3], [4]], direct=2, d1_prio=[-5, 20, 50], cadence=4))
    cfg['final'] = json.load(open(over.get('final_json', f'{HERE}/cfg_final.json')))
    cfg.update(json.load(open(over.get(tag + '_json', f'{HERE}/cfg_{tag}.json'))))
    for k, v in over.items():
        cfg[k] = dict(cfg[k], **v) if isinstance(v, dict) else v
    return cfg


def pinned(pins, names):
    c2 = Ctx()
    for n in names:
        c2.new(n, *pins[n])
    return c2


def text(seq):
    return [i.text if i.kind == 'label' else f'    {i.text}' for i in seq]


def make_loop(cf, tag, pins, log):
    while True:
        try:
            ctx, seq, lb, mp, entry = place_loop(cf, tag == 'safe', pins, tries=150)
            break
        except (RuntimeError, AssertionError):
            assert tag == 'safe' and cf['limit'] > 90
            cf['limit'] -= 3
    fix_vmcnt(ctx, seq)
    log(f'{tag} loop {lb.cycles} (stall {lb.stall}, chains {chain_count(seq)}, pressure {mp}/{len(POOL)})')
    return physical(ctx, seq), (cf, {k[1]: (ctx.size[k[1]], ctx.phys[k[1]]) for k in entry}, entry)


def make_start(cfg, edge, inf, outs, log, tries=60):
    pins = inf[1]
    taken = {pins[n][1][1] + e for n in outs for e in range(pins[n][0])}
    live = ENTRY_LIVE + (EDGE_LIVE if edge else ())
    ec = Ctx()
    eb = build_entry(ec, cfg, edge)
    ent = eb.schedule(inorder=True)
    allocate(ec, ent, [r for r in POOL if r not in taken], False, live_out=keys_of(ec, live))
    epins = dict(pins, **{n: (ec.size[n], ec.phys[n]) for n in live})
    P = dict(cfg['start'])
    while True:
        sc = pinned(epins, outs + list(live))
        sb = build_start(sc, dict(cfg, start=P), edge)
        sb.live_out = [k for k in inf[2] if k[1] in outs]
        seq = sb.schedule()
        try:
            mp, _, _ = allocate(sc, seq, POOL, False, live_out=sb.live_out, live_in=keys_of(sc, live), tries=tries)
            break
        except (RuntimeError, AssertionError):
            assert P['limit'] > 90
            P['limit'] -= 3
    if not edge:
        generate.times = [i.time for i in ent if i.kind != 'label'] + [i.time + eb.cycles for i in seq]
    out, n = pad_hazards(sc, physical(ec, ent) + physical(sc, seq))
    log(f'start edge={edge}: entry {eb.cycles} + {sb.cycles} cycles (stall {sb.stall}), {len(seq)} instructions, pressure {mp}, pads {n}')
    return out


def make_final(D, tag, inf, log, tries=60):
    cf, own, entry = inf
    cf = dict(cf, final=dict(D))
    while True:
        fc = pinned(own, own)
        fb = build_final(fc, cf, tag == 'safe')
        seq = fb.schedule()
        try:
            mp, _, _ = allocate(fc, seq, POOL, False, live_in=entry, tries=tries)
            break
        except (RuntimeError, AssertionError):
            assert cf['final']['limit'] > 90
            cf['final']['limit'] -= 3
    if tag == 'fast':
        generate.ftimes = [i.time for i in seq]
    log(f'{tag} final {fb.cycles} (stall {fb.stall}), pressure {mp}')
    return physical(fc, seq)


def copies(cfg, tag, loop, final):
    txt = []
    for w in range(1, 4):
        txt += [f'    s_cmp_eq_u32 s{S_H}, {w}', f'    s_cbranch_scc1 L_loop_{tag}{w}']
    txt.append(f'    s_branch L_loop_{tag}0')
    for w in range(4):
        txt += ['.p2align 6', f'L_loop_{tag}{w}:']
        dc = Ctx()
        own = []
        for p, i in enumerate(loop):
            if i.tag == 'clr':
                i = Ins(dc, i.text.replace('offset:512', f'offset:{512 - 128 * w}'))
            if i.kind == 'bar' and i.tag != f'bar{w}' or i.tag == 'dma4' and w >= 2 and cfg['trim'] or i.tag == 'w0' and w:
                if cfg['trim'] and p < len(loop) - 10:
                    continue
                i = Ins(dc, 's_nop 0')
            own.append(i)
        own, _ = pad_hazards(dc, own, own)
        txt += [f'    {i.text}'.replace('L_LOOP', f'L_loop_{tag}{w}') for i in own]
        if w < 3:
            txt.append(f'    s_branch L_final_{tag}')
    return txt + [f'L_final_{tag}:'] + text(final)


ARM = ['    s_and_b32 s3, s2, 0xf8', f'    s_add_u32 s{S_SRDC}, s{S_PD}, s3', f'    s_addc_u32 s{S_SRDC + 1}, s{S_PD + 1}, 0',
       f'    s_mov_b32 s{S_SRDC + 3}, 0x00020000']


def wrap_up(cfg, start, loop, final, rest):
    dc = Ctx()
    for pre in (start + [Ins(dc, 's_nop 2')], None):
        loop, n = pad_hazards(dc, loop, pre or loop)
    final, _ = pad_hazards(dc, final, loop)
    ref = open(f'{HERE}/../{NAME}.s.ref').read().split('\n')
    out = [x for x in ref if x.startswith(';') and '@launch' not in x][:13]
    out += [f'; @launch grid=(256,1,1) block=(256,1,1) lds={LDS_BYTES}',
            '; Generated by gen/kernel.py. One workgroup per CU, one attention head per wave.',
            '.amdgcn_target "amdgcn-amd-amdhsa--gfx950"', '.text', f'.globl {NAME}_kernel', '.p2align 12', '.p2align 8',
            f'.type {NAME}_kernel,@function', f'{NAME}_kernel:']
    out += text(start) + ['L_go:', '    s_waitcnt lgkmcnt(0)'] + ARM + copies(cfg, 'fast', loop, final)
    out += ['L_end:', '    s_nop 1', '    s_cmp_lg_u64 s[46:47], 0', '    s_cbranch_scc1 L_rerun', 'L_done:', '    s_endpgm']
    out += rest
    out += ['.section .rodata,"a"', '.p2align 6', f'.amdhsa_kernel {NAME}_kernel',
            '  .amdhsa_next_free_vgpr 512', '  .amdhsa_next_free_sgpr 102', '  .amdhsa_accum_offset 256',
            '  .amdhsa_group_segment_fixed_size 0', '  .amdhsa_kernarg_size 96', '  .amdhsa_user_sgpr_count 2',
            '  .amdhsa_user_sgpr_kernarg_segment_ptr 1', '  .amdhsa_system_sgpr_workgroup_id_x 1',
            '  .amdhsa_float_denorm_mode_32 3', '.end_amdhsa_kernel', '']
    return '\n'.join(out)


def generate(over={}, log=print):
    uniq.k = 0
    cfg = load_cfg('fast', over)
    scfg = dict(load_cfg('safe', over), hm=cfg['hm'])
    scfg['cut'] = min(scfg['cut'], 4 * ((cfg['hm'] - 1) // 6))
    loops, bridge, info, finals = {}, {}, {}, {}
    loops['fast'], info['fast'] = make_loop(cfg, 'fast', {}, log)
    loops['safe'], info['safe'] = make_loop(scfg, 'safe', info['fast'][1], log)
    pins = info['safe'][1]
    ys = [n for n in pins if n.startswith('y')]
    heads = [n for n in pins if n[:2] in ('xf', 'ka', 'qa', 'va')]
    fast_start = make_start(cfg, False, info['fast'], [n for n in info['fast'][1] if not n.startswith('y')], log)
    exact_start = make_start(dict(cfg, att=scfg['att'], start=START), True, info['safe'], heads, log)
    dc = pinned(pins, ys)
    db = build_drain(dc, cfg)
    drain = db.schedule()
    allocate(dc, drain, POOL, False, live_in=keys_of(dc, ys))
    drain, _ = pad_hazards(dc, physical(dc, drain), exact_start)
    gap = [Ins(dc, 's_nop 5')]
    for tag in loops:
        cf, own, entry = info[tag]
        bc = pinned(dict(pins, **own), set(heads) | set(own))
        bb = Block(bc, 'bridge')
        for t, kw in tile0(bc, tag == 'safe')[1][:cf['cut']]:
            bb(t)
        if tag == 'fast':
            bb(f'v_and_b32 {bc.new("par")}, 16, v{V_OR}')
            bb(f'v_sub_u32 v{V_QKE}, v{V_QKE}, %par')
            bb(f'v_mov_b32 v{V_ML}, 0')
        seq = bb.schedule(inorder=True)
        allocate(bc, seq, POOL, False, live_out=[k for k in entry if not k[1].startswith('y')], live_in=keys_of(bc, heads))
        bridge[tag], _ = pad_hazards(dc, physical(bc, seq), exact_start + gap)
        bridge[tag].append(Ins(dc, 's_nop 7'))
        finals[tag] = make_final(cfg['final'], tag, info[tag], log)
    loops['safe'], _ = pad_hazards(dc, loops['safe'], loops['safe'])
    finals['safe'], _ = pad_hazards(dc, finals['safe'], loops['safe'])
    rest = ['L_rerun:', f'    s_mov_b32 s{S_FORCE}, 0x7f000000',
            f'    s_lshr_b32 s{S_REM}, s{S_MASK}, {NFIX}',
            '    s_waitcnt vmcnt(0) lgkmcnt(0)', '    s_barrier',
            '    v_mbcnt_lo_u32_b32 v0, -1, 0', '    v_mbcnt_hi_u32_b32 v0, -1, v0', f'    v_lshl_add_u32 v0, s{S_H}, 6, v0',
            '    s_nop 7', '    s_branch L_again']
    rest += ['L_edge:'] + text(exact_start)
    rest += ['    s_waitcnt lgkmcnt(0)', f'    s_cmp_eq_u32 s{S_LAST}, 0', '    s_cbranch_scc1 L_drain', '    s_nop 0',
             f'    s_lshr_b32 s3, s{S_FORCE}, 8', '    s_cbranch_scc1 L_safe'] + text(bridge['fast']) + ['    s_branch L_go']
    rest += ['L_safe:'] + text(bridge['safe']) + ['L_LOOP:'] + text(loops['safe']) + text(finals['safe']) + ['    s_branch L_end']
    rest += ['L_drain:'] + text(drain) + ['    s_branch L_end']
    return wrap_up(cfg, fast_start, loops['fast'], finals['fast'], rest)


if __name__ == '__main__':
    path = sys.argv[1] if len(sys.argv) > 1 else f'{HERE}/../{NAME}.s'
    over = eval(sys.argv[2]) if len(sys.argv) > 2 else {}
    open(path, 'w').write(generate(over))
    if path.startswith('tmp'):
        json.dump(generate.times, open(path + '.times', 'w'))
        json.dump(generate.ftimes, open(path + '.ftimes', 'w'))
```

```python
import struct
from loop import *

LOG2E = 1.4426950408889634
NEG = -1e30
ROW = 196224
RGAP = ROW - 7 * 384
RING = 4
SHIFT_COS = 0.33
SW, SO, SR, S1, S2 = 48, 52, 56, 60, 64
S_LS = 46
S_RING = 68
S_GAP = 70
S_NP = 45
S_ARG = 76
S_FIRST = 71
ENTRY_LIVE = ('tid', 'l', 'g', 'c', 'big', 'ws0', 'ws1', 'ws2', 'rho0', 'rho1', 'rho2')
EDGE_LIVE = ('loR', 'hiR', 'loC', 'hiC')

for _a in range(0, 72 + 31 * 32):
    assert (_a * 911) >> 16 == _a // 72
for _a in range(4940, 5200):
    assert (_a * 58255) >> 22 == _a // 72
for _q in range(1280):
    assert (_q * 2731) >> 16 == _q // 24
for _q in range(192):
    assert (_q * 171) >> 10 == _q // 6
for _q in range(64):
    assert (_q * 37) >> 8 == _q // 7


def f32(x):
    return hex(struct.unpack('<I', struct.pack('<f', x))[0])


def uniq(ctx, stem, n=1):
    uniq.k += 1
    return ctx.new(f'{stem}_{uniq.k}', n)


uniq.k = 0


def rowcol(b, t):
    r, cc = uniq(b.ctx, 'r'), uniq(b.ctx, 'cc')
    b(f'v_mul_u32_u24 {r}, 37, {t}')
    b(f'v_lshrrev_b32 {r}, 8, {r}')
    b(f'v_mul_u32_u24 {cc}, 7, {r}')
    b(f'v_sub_u32 {cc}, {t}, {cc}')
    return r, cc


def slot_off(b, slot, dst, big, mask, nb7=None):
    a, q, s1 = uniq(b.ctx, 'a'), uniq(b.ctx, 'q'), slot
    if nb7:
        s1, e = uniq(b.ctx, 's'), uniq(b.ctx, 'e')
        b(f'v_min_u32 {s1}, {NFIX}, {slot}')
        b(f'v_add_u32 {q}, {32 - NFIX}, {slot}')
        b(f'v_lshrrev_b32 {q}, 5, {q}')
        b(f'v_sub_u32 {e}, {slot}, {s1}')
        b(f'v_mad_i32_i24 {e}, {q}, {nb7}, {e}')
    b(f'v_mul_u32_u24 {a}, s{S_DJ}, {s1}')
    b(f'v_add3_u32 {a}, {a}, {e}, s{S_J0}' if nb7 else f'v_add_u32 {a}, s{S_J0}, {a}')
    b(f'v_mul_u32_u24 {q}, 911, {a}')
    b(f'v_lshrrev_b32 {q}, 16, {q}')
    b(f'v_mul_u32_u24 {q}, s{S_DCAR}, {q}')
    b(f'v_mad_u32_u24 {q}, {s1}, s{S_DOFF}, {q}')
    b(f'v_bfe_u32 {a}, {mask}, {slot}, 1')
    b(f'v_cmp_ne_u32 vcc, 0, {a}')
    if nb7:
        b(f'v_mul_i32_i24 {e}, 2688, {e}')
        b(f'v_add3_u32 {dst}, {q}, {e}, s{S_TOK48}')
    else:
        b(f'v_add_u32 {dst}, s{S_TOK48}, {q}')
    b(f'v_cndmask_b32 {dst}, {big}, {dst}, vcc')


def walk_setup(b, edge):
    c = b.ctx
    sa, sb = 's3', f's{S_T1}'
    b(f's_mov_b32 s{S_NB}, {NBYTES}')
    b(f's_mov_b32 s{S_DCAR}, {7 * ROW - 72 * 7 * 384}')
    if True:
        b(f's_mul_i32 {sa}, s2, 911')
        b(f's_lshr_b32 {sa}, {sa}, 16')
        b(f's_mul_i32 {sb}, {sa}, 72')
        b(f's_sub_u32 s{S_J0}, s2, {sb}')
        b(f's_mul_i32 {sa}, {sa}, {7 * ROW}')
        b(f's_mul_i32 {sb}, s{S_J0}, {7 * 384}')
        b(f's_add_u32 {sa}, {sa}, {sb}')
        b(f's_add_u32 s{S_OFF + 2}, {sa}, {3 * ROW + 3 * 384}')
        b(f's_add_u32 s{S_TOK48}, {sa}, {9 * ROW + 9 * 384}')
        b(f's_mov_b32 s{S_DJ}, 31')
        b(f's_mov_b32 s{S_DOFF}, {3 * 7 * ROW + 31 * 7 * 384}')
        b(f's_mov_b32 s{S_N}, {NFIX}')
        b(f's_cmp_lt_u32 s2, 240')
        b(f's_cselect_b32 s{S_NP}, {NFIX + 8}, {NFIX + 4}')
    if not edge:
        return
    b('s_mov_b32 s5, 0')
    b('s_mov_b32 s6, 0')
    b('s_cmp_lt_u32 s2, 247')
    b('s_cbranch_scc1 L_inner')
    b(f's_mov_b32 s{S_DJ}, 0')
    b(f's_mov_b32 s{S_J0}, 0')
    b(f's_sub_u32 {sa}, s2, 247')
    b(f's_and_b32 {sa}, {sa}, 3')
    b(f's_mul_i32 {sa}, {sa}, 7')
    b(f's_add_u32 {sa}, {sa}, 3')
    b(f's_mov_b32 {sb}, {ROW}')
    b('s_cmp_lt_u32 s2, 251')
    b(f's_cselect_b32 {sb}, {sb}, 384')
    b('s_cselect_b32 s6, 1, 0')
    b('s_cselect_b32 s5, 0, 1')
    b(f's_mul_i32 s{S_OFF + 2}, {sa}, {sb}')
    b(f's_mul_i32 s{S_DOFF}, {sb}, 28')
    b('s_cmp_lt_u32 s2, 255')
    b(f's_cselect_b32 s{S_N}, 18, 1')
    b(f's_cselect_b32 s{S_NP}, 18, 1')
    b(f's_cselect_b32 s{S_OFF + 2}, s{S_OFF + 2}, 0')
    b('s_cselect_b32 s6, s6, 1')
    b(f's_add_u32 s{S_TOK48}, s{S_OFF + 2}, {6 * ROW + 6 * 384}')
    b('L_inner:')
    for nm, sr, unit in (('R', 5, ROW), ('C', 6, 384)):
        lo, hi = c.new('lo' + nm), c.new('hi' + nm)
        b(f's_mul_i32 {sa}, s{sr}, {507 * unit}')
        b(f's_mul_i32 {sb}, s{sr}, {-4 * unit}')
        b(f'v_mov_b32 {lo}, {sa}')
        b(f'v_mov_b32 {hi}, {sb}')
        b(f's_add_u32 s{S_TOK48}, s{S_TOK48}, {sb}')


def wrap(b, edge, tok, regs):
    if not edge:
        return
    r, x = rowcol(b, tok)
    b(f'v_cmp_gt_u32 vcc, 4, {r}')
    b(f'v_cndmask_b32 {r}, %hiR, %loR, vcc')
    b(f'v_cmp_gt_u32 vcc, 4, {x}')
    b(f'v_cndmask_b32 {x}, %hiC, %loC, vcc')
    for reg in regs:
        b(f'v_add3_u32 v{reg}, v{reg}, {r}, {x}')


def x_piece(b, edge, i):
    c = b.ctx
    q, tok, f = uniq(c, 't'), uniq(c, 't'), uniq(c, 't')
    if i:
        b(f'v_add_u32 {q}, {256 * i}, %tid')
    b(f'v_mul_u32_u24 {tok}, 2731, {q if i else "%tid"}')
    b(f'v_bfe_u32 {f}, {tok}, 17, 3')
    b(f'v_lshrrev_b32 {tok}, 16, {tok}')
    b(f'v_xor_b32 {q}, {f}, {q if i else "%tid"}')
    b(f'v_mul_u32_u24 {f}, 37, {tok}')
    b(f'v_lshrrev_b32 {f}, 8, {f}')
    b(f'v_lshlrev_b32 {q}, 4, {q}')
    b(f'v_mad_u32_u24 v{V_DMA + i}, {f}, s{S_GAP}, {q}')
    wrap(b, edge, tok, [V_DMA + i])
    if i == 4:
        b(f'v_cmp_gt_u32 vcc, 48, {tok}')
        b(f'v_cndmask_b32 v{V_DMA + 4}, %big, v{V_DMA + 4}, vcc')
    return tok, q


def first_x(b, edge):
    c, big = b.ctx, '%big'
    b(f's_mov_b32 s{S_GAP}, {RGAP}')
    walk_setup(b, edge)
    b(f's_bfm_b32 s{S_T0}, s{S_NP}, 0')
    b('s_and_b32 s4, s2, 7')
    b('s_sub_u32 s4, 0, s4')
    for i in range(3):
        tok, q = x_piece(b, edge, i)
        off, f = c.new(f'xe{i}a'), uniq(c, 't')
        slot_off(b, tok, off, big, f's{S_T0}', 's4' if i else None)
        b(f'v_mul_u32_u24 {f}, 384, {tok}')
        b(f'v_sub_u32 {f}, {q}, {f}')
        b(f'v_add_u32 {off}, {off}, {f}')
    b(f's_lshl_b32 s{S_M0A}, s{S_H}, 10')
    b(f's_add_u32 s{S_M0A}, s{S_M0A}, {L_X}')


def build_entry(ctx, cfg, edge):
    b = Block(ctx, 'entry')
    c = ctx
    fl = cfg['ld_flags']
    srds = ((S_SRDX, 0, NBYTES), (SW, 8, 31 * 1152 + 384), (SO, 16, 73728), (S1, 32, 64), (S2, 40, 128), (SR, 48, 676), (S_SRDO, 72, 0))
    if not edge:
        pa = c.new('pa', 2)
        A = cfg['pf_all']
        b(f's_mov_b32 s{S_FORCE}, 0')
        b('L_again:')
        b(f's_load_dwordx16 s[{S_ARG}:{S_ARG + 15}], s[0:1], 0')
        b(f'v_readfirstlane_b32 s{S_H}, v0')
        b('s_cmp_ge_u32 s2, 256')
        b('s_cbranch_scc1 L_done')
        b(f's_lshr_b32 s{S_H}, s{S_H}, 6')
        b('s_cbranch_scc1 L_nopf')
        b('s_getpc_b64 s[96:97]')
        b(f's_bfe_u32 s3, s2, {hex(cfg["pf_bits"] << 16 | 3)}')
        b(f's_mul_i32 s3, s3, {64 - A}')
        b(f'v_cmp_gt_u32 vcc, {A}, v0')
        b(f'v_add_u32 {pa}.0, s3, v0')
        b(f'v_mov_b32 {pa}.1, 0')
        b(f'v_cndmask_b32 {pa}.0, {pa}.0, v0, vcc')
        b(f'v_lshlrev_b32 {pa}.0, 7, {pa}.0')
        b(f'v_lshl_add_u64 {pa}, s[96:97], 0, {pa}')
        b(f'global_load_dword a255, {pa}, off offset:992')
        b('L_nopf:')
        b(f's_max_u32 s3, s2, s{S_FORCE}')
        b('s_cmp_ge_u32 s3, 247')
        b('s_cbranch_scc1 L_edge')
    tid, l, g, cc, big = c.new('tid'), c.new('l'), c.new('g'), c.new('c'), c.new('big')
    b(f'v_mov_b32 {tid}, v0')
    b(f'v_mov_b32 {big}, 0x40000000')
    if cfg['start']['stouch']:
        b(f's_lshl_b32 s3, s{S_H}, 4')
        b('s_load_dwordx4 s[92:95], s[0:1], s3')
    wu = c.new('wu', 2)
    b(f'v_and_b32 {l}, 63, v0')
    b('s_bfe_u32 s3, s2, 0x50003')
    b(f's_lshl_b32 s4, s{S_H}, 3')
    b('s_lshr_b32 s98, 0x06143a01, s4')
    b('s_and_b32 s98, s98, 0xff')
    b('s_mul_i32 s3, s3, s98')
    b('s_sub_u32 s98, s98, 1')
    b('s_lshr_b32 s4, 0x0048d800, s4')
    b('s_and_b32 s4, s4, 0xff')
    b('s_lshl_b32 s4, s4, 3')
    b('s_max_u32 s4, s4, 6')
    b('s_sub_u32 s4, s4, s98')
    b('s_sub_u32 s4, s4, 1')
    b('s_min_u32 s3, s3, s4')
    b(f'v_min_u32 {wu}.0, s98, {l}')
    b(f'v_add_lshl_u32 {wu}.0, {wu}.0, s3, 7')
    b(f'v_mov_b32 {wu}.1, 0')
    b(f'v_lshrrev_b32 {g}, 4, {l}')
    b(f'v_and_b32 {cc}, 15, {l}')
    for srd, off, size in srds[:2]:
        b(f's_mov_b32 s{srd + 2}, {size}')
        b(f's_mov_b32 s{srd + 3}, 0x00020000')

    def staging():
        l16 = uniq(c, 't')
        b(f's_mul_i32 s3, s{S_H}, 96')
        b(f'v_lshl_add_u32 {l16}, {l}, 4, s3')
        for i in range(3):
            rho, k, ws = c.new(f'rho{i}'), uniq(c, 't'), c.new(f'ws{i}')
            if i:
                b(f'v_add_u32 {rho}, {64 * i}, {l}')
            b(f'v_mul_u32_u24 {rho}, 171, {rho if i else l}')
            b(f'v_lshrrev_b32 {rho}, 10, {rho}')
            b(f'v_lshrrev_b32 {k}, 1, {rho}')
            b(f'v_xor_b32 {k}, {k}, {rho}')
            b(f'v_and_b32 {k}, 4, {k}')
            b(f'v_mul_u32_u24 {k}, 3, {k}')
            b(f'v_xor_b32 {k}, {k}, {rho}')
            b(f'v_mul_u32_u24 {k}, 1152, {k}')
            b(f'v_mul_u32_u24 {ws}, 96, {rho}')
            b(f'v_sub_u32 {k}, {k}, {ws}')
            b(f'v_add_u32 {ws}, {l16}, {k}')
        b(f's_mul_i32 s{S_RING}, s{S_H}, 6144')
        b(f's_add_u32 s{S_RING + 1}, s{S_RING}, {TOG}')
        b(f's_cmp_eq_u32 s{S_H}, 3')
        b(f's_cselect_b32 s{S_RING}, {L_OE}, s{S_RING}')
        b(f's_cselect_b32 s{S_RING + 1}, {L_OE + 6144}, s{S_RING + 1}')

    late = not edge and cfg['start']['x0_at'] >= 0
    nx = 6 if cfg['start'].get('late_a', 0) == 4 else 5
    if late:
        staging()
    else:
        first_x(b, edge)
    b('s_waitcnt lgkmcnt(0)')
    if cfg['start']['stouch']:
        b('s_load_dword s101, s[92:93], 0')
        b('s_load_dword s101, s[94:95], 0')
    ptr = lambda off: f's[{S_ARG + off // 4}:{S_ARG + off // 4 + 1}]'
    for i, (w, off) in enumerate(((2, 16), (3, 48))):
        b(f's_cmp_eq_u32 s{S_H}, {w}')
        b(f's_cselect_b64 s[98:99], {ptr(off)}, ' + (ptr(8) if i == 0 else 's[98:99]'))
    b(f's_mov_b64 s[{S_SRDX}:{S_SRDX + 1}], {ptr(0)}')
    b(f'v_lshl_add_u64 {wu}, s[98:99], 0, {wu}')
    b(f's_cmp_eq_u32 s{S_H}, 2')
    b(f's_cselect_b64 s[98:99], {ptr(32)}, {ptr(24)}')
    b(f's_cmp_eq_u32 s{S_H}, 3')
    b(f's_cselect_b64 s[98:99], {ptr(40)}, s[98:99]')
    b(f'v_writelane_b32 {wu}.0, s98, 63')
    b(f'v_writelane_b32 {wu}.1, s99, 63')

    def warm():
        lab = 'L_nowu' + ('e' if edge else '')
        b(f's_cmp_eq_u32 s{S_H}, 0')
        b(f's_cbranch_scc1 {lab}')
        b(f'global_load_dword a254, {wu}, off')
        b(lab + ':')

    order = cfg['start']['order']
    for i in range(nx):
        if i == order:
            warm()
        if not late:
            b(f's_add_u32 m0, s{S_M0A}, {L_XE - L_X + 4096 * i if i < 3 else 4096 * (i - 3)}')
            src = f'%xe{i}a, s[{S_SRDX}:{S_SRDX + 3}], 0' if i < 3 else f'v{V_DMA + i - 3}, s[{S_SRDX}:{S_SRDX + 3}], s{S_OFF + 2}'
            b(f'buffer_load_dwordx4 {src} offen{"" if i in (1, 2) else fl} lds')
    for srd, off, size in srds[1:-1] + ((S_LS, 24, 0),):
        b(f's_mov_b64 s[{srd}:{srd + 1}], {ptr(off)}')
    b(f's_load_dwordx4 s[{S_PO}:{S_PO + 3}], s[0:1], 72')
    if not late:
        staging()
    return b


def build_start(ctx, cfg, edge):
    b = Block(ctx, 'start', lds_lat=cfg['start'].get('lds_lat', 112))
    b.auto_vm = b.free_scc = True
    P = cfg['start']
    b.gap_dma, b.gap_ld, b.vm_lat, b.vm_first, b.vm_rate = P['gap_dma'], P['gap_ld'], P['vm_lat'], P['vm_first'], P['vm_rate']
    b.fifo, b.limit, b.fifo_used, b.burst = P['fifo'], P['limit'], P['fifo_used'], P['burst']
    b.vm_entry = P['hold']
    c = ctx
    l, g, cc, big = '%l', '%g', '%c', '%big'
    T = lambda: uniq(c, 't')
    sreg = [S_FIRST]

    def SG():
        sreg[0] += 1
        assert sreg[0] <= 100
        return f's{sreg[0] - 1}'

    def smad(mul, add):
        s = SG()
        b(f's_mul_i32 {s}, s{S_H}, {mul}')
        if add:
            b(f's_add_u32 {s}, {s}, {add}')
        return s

    fl = cfg['ld_flags']
    DP = -5000
    spans = []

    def mark(k):
        spans.append((k, len(b.ins)))

    def dma_group(lds, soff, regs, srd, after=(), flags='', lat=None):
        b(f's_add_u32 m0, {lds[0]}, {lds[1]}', prio=DP)
        if soff[1]:
            b(f's_add_u32 s4, {soff[0]}, {soff[1]}', prio=DP)
        so = 's4' if soff[1] else soff[0]
        out = []
        for i, r in enumerate(regs):
            off = f' offset:{1024 * i}' if i else ''
            out.append(b(f'buffer_load_dwordx4 {r}, s[{srd}:{srd + 3}], {so} offen{off}{flags} lds', after=after, prio=DP, lat=lat))
        return out

    def xdma(pieces, tog, soff, after=(), lat=None):
        out = []
        for i in pieces:
            lds = (f's{S_M0A}', 4096 * i + (TOG if tog else 0)) if i < 4 else (s5b if tog else f's{S_M0B}', 0)
            out += dma_group(lds, (f's{soff}', 0), [f'v{V_DMA + i}'], S_SRDX, after, fl, lat)
        return out

    b.cur = -4000
    for srd, size in ((SO, 32 * 384), (S1, 64), (S2, 128), (SR, 676), (S_SRDO, 0)):
        b(f's_mov_b32 s{srd + 2}, {size}')
        b(f's_mov_b32 s{srd + 3}, 0x00020000')
    b.cur = -950
    sa1, sa2, sa3 = c.new('sa1'), c.new('sa2'), c.new('sa3')
    b(f'v_lshlrev_b32 {sa1}, 1, {l}')
    b(f'v_mul_u32_u24 {sa2}, 12, {cc}')
    b(f'v_add_u32 {sa2}, {smad(192, 0)}, {sa2}')
    b(f'v_lshlrev_b32 {sa3}, 5, {g}')
    ws = [f'%ws{i}' for i in range(3)]
    wso = [c.new(f'wso{i}') for i in range(3)]
    wtr, wor = [c.new(f'wtr{k}') for k in range(4)], [[T(), T()], [T(), T()]]
    s_qke, s_ve = smad(QKE_H, L_QKE), smad(VE_H, L_VE)
    b(f's_cmp_eq_u32 s{S_H}, 3')
    b(f's_cselect_b32 {s_ve}, {L_VE3}, {s_ve}')
    ring = [f's{S_RING}', f's{S_RING + 1}', s_qke, s_ve]
    pair_of = lambda n: n // 2 if n < 8 else (n % RING) // 2
    AHEAD = 8
    chunks = [(m, s) for m in (1, 0, 2, 3) for s in range(6)]
    ch_ld, ch_rd = {}, {}
    at = {SW: 0, SO: 0}
    half = {}
    for p in range(4):
        half[3 * p], half[3 * p + 1] = (p, 0), (p, 1)
        half[3 * p + 2] = (4 + p // 2, p & 1)

    def wo_pair(t, jc):
        bank, r = wo_reg(jc, half[t][0])
        return bank, r + 2 * half[t][1]

    def late_x():
        for i in range(3, 5):
            x_piece(b, edge, i)
        s5 = SG()
        b(f's_add_u32 {s5}, s{S_M0A}, 16384')
        b(f's_cmp_lt_u32 s{S_H}, 2')
        b(f's_cselect_b32 s{S_M0B}, {s5}, {L_DUM}')
        b(f's_cselect_b32 s{S_M0T}, {TOG}, 0')
        b(f's_xor_b32 {s5b}, s{S_M0B}, s{S_M0T}')

    def issue_chunk(n, after=()):
        m, s = chunks[n]
        lds = (ring[pair_of(n)], (n & 1) * 3072)
        srd, off = (SW, m * 384 + s * 32 * 1152) if m < 3 else (SO, s * 32 * 384)
        d = off - at[srd]
        at[srd] = off
        if d:
            b(f's_{"add" if d > 0 else "sub"}_u32 s{srd}, s{srd}, {abs(d)}', prio=DP)
            b(f's_{"addc" if d > 0 else "subb"}_u32 s{srd + 1}, s{srd + 1}, 0', prio=DP)
        ch_ld[n] = dma_group(lds, ('0', 0), ws if m < 3 else wso, srd, after)

    def read_chunk(n):
        m, s = chunks[n]
        pair, off = pair_of(n), (n & 1) * 3072
        ch_rd[n] = []
        for jd in range(3):
            for u in range(2):
                if m < 3:
                    base = 72 * m + (jd * 6 + s) * 4 + 2 * u
                    text = f'ds_read_b64_tr_b16 a[{base}:{base + 1}], {wtr[pair]} offset:{off + u * 768 + 32 * jd}'
                else:
                    bank, r = wo_pair(2 * s + u, jd)
                    text = f'ds_read_b64 {bank}[{r}:{r + 1}], {wor[pair][jd == 2]} offset:{off + u * 1536 + (8 if jd == 1 else 0)}'
                ch_rd[n].append(b(text, after=ch_ld[n], prio=-3000))

    x_rest, x_next, x_ld = [], [], []
    s5b = SG()
    x0_at = -1 if edge else P['x0_at']
    late_a = P.get('late_a', 0)
    assert x0_at >= 0 or late_a in (0, 4)
    if x0_at >= 0:
        t = b.cur
        b.cur = -920
        first_x(b, edge)
        b.cur = t

    def xe_dma(lat):
        return [x for i in range(3) for x in dma_group((f's{S_M0A}', L_XE - L_X + 4096 * i), ('0', 0), [f'%xe{i}a'], S_SRDX,
                                                       flags='' if i else fl, lat=lat)]

    n_first = (2, 0, 2, 3, 3)[late_a]
    ready_late = ((1, 2), (0, 1, 2), (1, 2, 3, 4), (2, 3, 4), (2,))[late_a]

    def x_first():
        if late_a not in (2, 3):
            x_ld.extend(xe_dma(P['x0_lat']))
        x_ld.extend(xdma(range(n_first), False, S_OFF + 2, lat=P['x0_lat']))

    def x_second():
        return (xe_dma(P['x_lat']) if late_a in (2, 3) else []) + xdma(range(n_first, 5), False, S_OFF + 2, lat=P['x_lat'])

    for n in range(AHEAD):
        if n == x0_at:
            x_first()
        if n == P['x_at']:
            late_x()
            x_rest = x_second()
        issue_chunk(n)
    if x0_at < 0:
        x_ld = x_rest[:1] if P['x_at'] == 0 else ch_ld[0][:1]
    w1, rc, w2a, w2b = c.new('w1', 2), c.new('rc', 4), c.new('w2a', 4), c.new('w2b', 4)
    sm_after = [ch_ld[P['small_after']][-1]]
    b(f'buffer_load_ushort {w1}.0, {sa1}, s[{S1}:{S1 + 3}], 0 offen', prio=DP - 1, after=sm_after)
    b(f'buffer_load_dwordx3 {rc}.0:2, {sa2}, s[{SR}:{SR + 3}], 0 offen', prio=DP - 1, after=sm_after)
    b(f'buffer_load_dwordx4 {w2a}, {sa3}, s[{S2}:{S2 + 3}], 0 offen', prio=DP - 1, after=sm_after)
    b(f'buffer_load_dwordx4 {w2b}, {sa3}, s[{S2}:{S2 + 3}], 0 offen offset:16', prio=DP - 1, after=sm_after)
    tau = c.new('tau')
    b(f'v_lshlrev_b32 {tau}, 1, {g}', prio=DP)
    b(f'global_load_ushort {tau}, {tau}, s[{S_LS}:{S_LS + 1}]', prio=DP - 1, after=sm_after)

    b.cur = -450
    mark(6)
    if P['x_at'] >= AHEAD:
        late_x()
    mark(None)
    s_gap = f's{S_GAP}'

    b.cur = -700
    c4, c3 = c.new('c4'), c.new('c3')
    b(f'v_lshrrev_b32 {c4}, 2, {cc}')
    b(f'v_and_b32 {c3}, 3, {cc}')
    t0, swz, c384 = T(), T(), T()
    b(f'v_lshrrev_b32 {swz}, 1, {cc}')
    b(f'v_xor_b32 {t0}, {swz}, {g}')
    b(f'v_mul_u32_u24 {c384}, 384, {cc}')
    b(f'v_lshl_add_u32 v{V_XA0}, {t0}, 4, {c384}')
    b(f'v_xor_b32 v{V_XA1}, 64, v{V_XA0}')
    t0 = T()
    b(f'v_and_b32 {t0}, 2, {g}')
    b(f'v_add_u32 {t0}, {t0}, {g}')
    b(f'v_lshl_add_u32 {t0}, {t0}, 2, {c4}')
    b(f'v_mul_u32_u24 {t0}, 96, {t0}')
    b(f'v_lshl_add_u32 {t0}, {c3}, 3, {t0}')
    for k in range(4):
        b(f'v_add_u32 {wtr[k]}, {ring[k]}, {t0}')
    for r in range(4):
        b(f'v_mov_b32 v{V_ONES + r}, 0x3f803f80')
    tw = c.new('tw')
    b(f'v_mul_u32_u24 {tw}, 768, {g}')
    b(f'v_add_u32 {tw}, {sa2}, {tw}')
    b(f'v_add_u32 {tw}, {L_TAB}, {tw}')
    s_lo = SG()
    b(f's_mov_b32 {s_lo}, 0x3f80')
    par, one, g16 = T(), T(), T()
    b(f'v_and_b32 {par}, 1, {cc}')
    b(f'v_lshlrev_b32 {par}, 4, {par}')
    b(f'v_lshlrev_b32 {one}, {par}, {s_lo}')
    b(f'v_cmp_gt_u32 vcc, 2, {c3}')
    for r in range(4):
        b(f'v_cndmask_b32 v{V_SEL + r}, ' + (f'{one}, 0' if r & 1 else f'0, {one}') + ', vcc')
    hone = T()
    b(f'v_mov_b32 {hone}, 0x3c003c00')
    for r in range(4):
        b(f'v_cmp_eq_u32 vcc, {r}, {c3}')
        b(f'v_cndmask_b32 v{V_SELH + r}, 0, {hone}, vcc')
    b(f'v_mov_b32 v{V_MX}, 1.0')
    eye = c.new('eye', 2)
    b(f'v_cmp_eq_u32 vcc, {g}, {c4}')
    b(f'v_cndmask_b32 {eye}.0, 0, v{V_SEL}, vcc')
    b(f'v_cndmask_b32 {eye}.1, 0, v{V_SEL + 1}, vcc')
    b(f'v_lshlrev_b32 {g16}, 4, {g}')
    b.cur = -300
    mark(3)
    s_main, s_tail = smad(64, 0), smad(32, 192)
    for i in range(3):
        pc, t0, t1 = T(), T(), T()
        b(f'v_mul_u32_u24 {t0}, 6, %rho{i}')
        b(f'v_sub_u32 {pc}, {l}, {t0}')
        b(f'v_mul_u32_u24 {t0}, 384, %rho{i}')
        b(f'v_lshl_add_u32 {t0}, {pc}, 4, {t0}')
        b(f'v_add_u32 {t1}, {s_tail}, {t0}')
        b(f'v_add_u32 {t0}, {s_main}, {t0}')
        b(f'v_cmp_gt_i32 vcc, {4 - 64 * i}, {pc}')
        b(f'v_cndmask_b32 {wso[i]}, {t1}, {t0}, vcc')
    c96 = T()
    b(f'v_mul_u32_u24 {c96}, 96, {cc}')
    for k in range(2):
        b(f'v_add3_u32 {wor[k][0]}, {c96}, {g16}, s{S_RING + k}')
        b(f'v_lshl_add_u32 {wor[k][1]}, {g}, 3, {c96}')
        b(f'v_add3_u32 {wor[k][1]}, {wor[k][1]}, 64, s{S_RING + k}')

    b.cur = -500
    mark(0)
    b(f's_mov_b32 s{S_J}, s{S_J0}')
    b(f's_mov_b32 s{S_OFF}, s{S_OFF + 2}')
    b(f's_mov_b32 s{S_OFF + 3}, 0')
    b(f's_mov_b32 s{S_OFF + 4}, 0')
    b(f's_mov_b32 s{S_IT}, 0')
    for k in range(2):
        b(f's_add_u32 s{S_J}, s{S_J}, s{S_DJ}')
        b(f's_add_u32 s{S_OFF}, s{S_OFF}, s{S_DOFF}')
        b(f's_cmp_ge_u32 s{S_J}, 72')
        b(f's_cselect_b32 s{S_T0}, 72, 0')
        b(f's_cselect_b32 s{S_T1}, s{S_DCAR}, 0')
        b(f's_sub_u32 s{S_J}, s{S_J}, s{S_T0}')
        b(f's_add_u32 s{S_OFF}, s{S_OFF}, s{S_T1}')
        if k == 0:
            b(f's_mov_b32 s{S_OFF + 1}, s{S_OFF}')
    mark(1)
    g4, g2 = T(), T()
    b(f'v_lshl_add_u32 {g4}, {g}, 4, {smad(64, 0)}')
    b(f'v_lshl_add_u32 {g2}, {g}, 3, {smad(32, 256)}')
    colr = []
    for j in range(3):
        tok, r, t0 = T(), T(), T()
        b(f'v_add_u32 {tok}, {16 * j}, {cc}')
        b(f'v_mul_u32_u24 {r}, 37, {tok}')
        b(f'v_mul_u32_u24 {t0}, 384, {tok}')
        b(f'v_lshrrev_b32 {r}, 8, {r}')
        b(f'v_mad_u32_u24 {t0}, {r}, {s_gap}, {t0}')
        b(f'v_add_u32 v{V_ST4 + j}, {t0}, {g4}')
        b(f'v_add_u32 v{V_ST2 + j}, {t0}, {g2}')
        wrap(b, edge, tok, [V_ST4 + j, V_ST2 + j])
        colr.append((tok, r))
    mark(4)
    s_tab = smad(768, L_TAB)
    aq = []
    gat = []
    for j in range(3):
        tok, r = colr[j]
        a, t0 = T(), T()
        b(f'v_mul_u32_u24 {t0}, 24, {r}')
        b(f'v_lshl_add_u32 {t0}, {tok}, 2, {t0}')
        b(f'v_add_u32 v{V_BEX + 2 * j}, {s_tab}, {t0}')
        b(f'v_sub_u32 v{V_BEX + 2 * j + 1}, {s_tab}, {t0}')
        b(f'v_sub_u32 {a}, v{V_BEX + 2 * j}, {g16}')
        aq.append(a)
        gat += [(f'v{V_BEX + 2 * j}', 0), (f'v{V_BEX + 2 * j + 1}', 672)]
    g148, s24 = T(), SG()
    b(f'v_mul_u32_u24 {g148}, 148, {g}')
    b(f's_mov_b32 {s24}, -24')
    for jk in range(3):
        for r in range(4):
            rk = T()
            b(f'v_add_u32 {rk}, {37 * (16 * jk + r)}, {g148}')
            b(f'v_lshrrev_b32 {rk}, 8, {rk}')
            for jq in range(3):
                reg = V_BIAS + (jq * 3 + jk) * 4 + r
                b(f'v_mad_i32_i24 v{reg}, {rk}, {s24}, {aq[jq]}')
                gat.append((f'v{reg}', 336 - 4 * (16 * jk + r)))
    bee = c.new('bee')
    b(f'v_mov_b32 {bee}, {s_tab}')
    gat.append((bee, 336))
    mark(2)
    l16 = T()
    b(f'v_lshlrev_b32 {l16}, 4, {l}')
    b(f'v_xor_b32 v{V_OR}, {TOG}, {l16}')
    b(f'v_lshl_add_u32 v{V_OW}, s{S_H}, 10, {l16}')
    sh, sl, st = SG(), SG(), SG()
    b(f's_lshr_b32 {sh}, s{S_H}, 1')
    b(f's_and_b32 {sl}, s{S_H}, 1')
    b(f's_lshl_b32 {sl}, {sl}, 3')
    b(f's_lshl_b32 {st}, {sh}, 10')
    b(f's_add_u32 {st}, {st}, {sl}')
    b(f'v_add_u32 v{V_OT}, {st}, {l16}')
    b(f's_lshl_b32 {sh}, {sh}, 11')
    b(f's_add_u32 {sh}, {sh}, {sl}')
    b(f's_add_u32 {sh}, {sh}, {L_OE + 4 * 2048}')
    t0, t1, t2 = T(), T(), T()
    b(f'v_lshl_add_u32 {t0}, {g}, 3, {smad(2048, L_OE)}')
    b(f'v_mov_b32 {t1}, {sh}')
    b(f'v_cmp_gt_u32 vcc, 2, {g}')
    b(f'v_cndmask_b32 {t0}, {t1}, {t0}, vcc')
    b(f'v_lshl_add_u32 {t0}, {c4}, 9, {t0}')
    b(f'v_lshl_add_u32 {t0}, {c3}, 1, {t0}')
    b(f'v_mov_b32 {t2}, {L_OED}')
    b(f'v_cmp_gt_u32 vcc, 3, {g}')
    b(f'v_cndmask_b32 v{V_OE}, {t2}, {t0}, vcc')
    g80 = T()
    b(f'v_mul_u32_u24 {g80}, 80, {g}')
    qke0 = f'v{V_QKE}' if edge else T()
    b(f'v_add3_u32 {qke0}, {g80}, {par}, {s_qke}')
    if not edge:
        b(f'v_add_u32 v{V_QKE}, {s_qke}, {g80}')
    b(f'v_lshl_add_u32 v{V_VE}, {cc}, 2, {s_ve}')
    s_pe = smad(128, L_PE)
    b(f'v_add_u32 v{V_PR}, {s_pe}, {g16}')
    t0 = T()
    b(f'v_lshrrev_b32 {t0}, 1, {g}')
    b(f'v_mul_u32_u24 {t0}, 48, {t0}')
    b(f'v_lshl_add_u32 {t0}, {g}, 3, {t0}')
    b(f'v_lshl_add_u32 {t0}, {c4}, 4, {t0}')
    b(f'v_lshl_add_u32 {t0}, {c3}, 1, {t0}')
    b(f'v_add_u32 v{V_PW}, {s_pe}, {t0}')
    for r in range(1, 4):
        b(f'v_mov_b32 v{V_P1 + r}, 0')
    b(f's_mov_b64 s[{S_PX}:{S_PX + 1}], s[{S_SRDX}:{S_SRDX + 1}]')
    b(f's_mov_b32 s{S_EPSQ}, {f32(0.25e-12)}')
    b(f's_mov_b32 s{S_EPSY}, {f32(192e-5 / 16)}')
    mark(None)
    xa0, xa1 = c.new('xea0'), c.new('xea1')
    b(f'v_add_u32 {xa0}, {L_XE}, v{V_XA0}')
    b(f'v_add_u32 {xa1}, {L_XE}, v{V_XA1}')
    mark(5)
    dum = T()
    b(f'v_lshlrev_b32 {dum}, 4, {cc}')
    b(f'v_add_u32 {dum}, {L_DUM}, {dum}')
    qw, ew, vw = [T(), T()], [T(), T()], [T(), T()]
    b(f'v_mul_u32_u24 {qw[0]}, {QKE_S}, {cc}')
    b(f'v_add3_u32 {qw[0]}, {qw[0]}, {g80}, {s_qke}')
    b(f'v_mul_u32_u24 {ew[0]}, {VE_S}, {cc}')
    b(f'v_add3_u32 {ew[0]}, {ew[0]}, {g16}, {s_ve}')
    b(f'v_mul_u32_u24 {vw[0]}, {4 * VE_S}, {g}')
    b(f'v_add_u32 {vw[0]}, {vw[0]}, v{V_VE}')
    b(f'v_add_u32 {qw[1]}, {16 * QKE_S}, {qw[0]}')
    b(f'v_add_u32 {ew[1]}, {16 * VE_S}, {ew[0]}')
    b(f'v_add_u32 {vw[1]}, {16 * VE_S}, {vw[0]}')
    b(f'v_cmp_gt_u32 vcc, {NSLOT - 16}, {cc}')
    b(f'v_cndmask_b32 {qw[1]}, {dum}, {qw[1]}, vcc')
    b(f'v_cndmask_b32 {ew[1]}, {dum}, {ew[1]}, vcc')
    b(f'v_cmp_gt_u32 vcc, {(NSLOT - 16) // 4}, {g}')
    b(f'v_cndmask_b32 {vw[1]}, {dum}, {vw[1]}, vcc')
    sreg[0] += sreg[0] & 1
    row0 = f's[{sreg[0]}:{sreg[0] + 1}]'
    sreg[0] += 2
    b(f'v_cmp_gt_u32 {row0}, 16, {l}')
    neg = c.new('neg')
    b(f'v_mov_b32 {neg}, {f32(NEG)}')

    mark(None)
    b.cur = -1600
    shift = T()
    b(f'v_lshlrev_b32 {tau}, 16, {tau}')
    b(f'v_max_f32 {tau}, {f32(-100.0)}, {tau}')
    b(f'v_min_f32 {tau}, {f32(4.59375)}, {tau}')
    b(f'v_mul_f32 {tau}, {f32(LOG2E)}, {tau}')
    b(f'v_exp_f32 {tau}, {tau}')
    b(f'{CVT} {tau}, {tau}, {tau}')
    b(f'v_and_b32 {tau}, 0xffff0000, {tau}')
    b(f'v_mul_f32 {tau}, {f32(LOG2E)}, {tau}')
    b(f'v_mul_f32 {shift}, {f32(-SHIFT_COS)}, {tau}')
    b(f'v_add_f32 {shift}, {f32(-8 * LOG2E)}, {shift}')
    b(f'v_readlane_b32 s{S_C}, {tau}, {smad(16, 0)}')

    b.cur = -1500
    b(f'v_mov_b32 {w1}.1, 0')
    w2, psel = c.new('w2', 2), T()
    sreg[0] += sreg[0] & 1
    upper = f's[{sreg[0]}:{sreg[0] + 1}]'
    sreg[0] += 2
    b(f'v_cmp_lt_u32 {upper}, 7, {cc}')
    b(f'v_and_b32 {psel}, 1, {c4}')
    b(f'v_mul_u32_u24 {psel}, 0x020202, {psel}')
    b(f'v_lshl_or_b32 {psel}, {psel}, 8, {psel}')
    b(f'v_add_u32 {psel}, 0x05040100, {psel}')
    for k, w in enumerate((w2a, w2b)):
        b(f'v_cndmask_b32 {w}.0, {w}.0, {w}.1, {upper}')
        b(f'v_cndmask_b32 {w}.2, {w}.2, {w}.3, {upper}')
        b(f'v_perm_b32 {w2}.{k}, {w}.2, {w}.0, {psel}')
    pub = []
    for t in range(3):
        rb = c.new(f'rb{t}', 2)
        b(f'v_bfe_u32 {rb}.0, {rc}.{t}, {g16}, 16')
        b(f'v_mov_b32 {rb}.1, 0')
        b(f'{M16} {c.new(f"hd{t}", 4)}, {w1}, {rb}, 0')
        for r in range(4):
            b(f'v_max_f32 %hd{t}.{r}, 0, %hd{t}.{r}')
        hp = c.new(f'hp{t}', 2)
        b(f'{CVT} {hp}.0, %hd{t}.0, %hd{t}.1')
        b(f'{CVT} {hp}.1, %hd{t}.2, %hd{t}.3')
        b(f'{M16} {c.new(f"z{t}", 4)}, {w2}, {hp}, 0')
        for fmt in (CVT + ' {0}, {0}, {0}', 'v_and_b32 {0}, 0xffff0000, {0}', f'v_mul_f32 {{0}}, {f32(-LOG2E)}, {{0}}', 'v_exp_f32 {0}, {0}',
                    'v_add_f32 {0}, 1.0, {0}', 'v_rcp_f32 {0}, {0}', CVT + ' {0}, {0}, {0}', 'v_and_b32 {0}, 0xffff0000, {0}',
                    f'v_fmamk_f32 {{0}}, {{0}}, {f32(16 * LOG2E)}, {shift}'):
            b(fmt.format(f'%z{t}.0'))
        pub.append(b(f'ds_write_b32 {tw}, %z{t}.0 offset:{4 * t}'))
    for n in range(AHEAD):
        read_chunk(n)
    for n in range(AHEAD, 25):
        if n == x0_at:
            x_first()
        if n == P['x_at']:
            x_rest = x_second()
        if n == min(24, P['x1_at']):
            b(f's_lshr_b32 s{S_SRDX + 2}, s{S_N}, 1', prio=DP)
            b(f's_cselect_b32 s{S_SRDX + 2}, s{S_NB}, 0', prio=DP)
            x_next = xdma(range(5), True, S_OFF + 1, lat=P['x1_lat'])
        if n < 24:
            issue_chunk(n, ch_rd[n - 8 if n < 12 else n - RING])
            read_chunk(n)
    freed = [x for n in range(4, 8) for x in ch_rd[n]]
    barr, pre = None, []
    if x0_at > 1:
        bar1 = b('s_barrier', after=pub)
        pre = [bar1]
    if not edge and P['xr_mode'] == 2:
        bar0 = barr = b('s_barrier', after=x_ld + x_rest + pre)
    else:
        bar0 = b('s_barrier', after=x_ld + pre)
        if not edge and P['xr_mode'] == 1:
            barr = b('s_barrier', after=x_rest + [bar0])
    barx = barr or bar0
    if not pre:
        bar1 = barx = b('s_barrier', after=pub + [barx])
    b.cur = P['gather']
    fin = []
    for reg, off in gat:
        fin.append(b(f'ds_read_b32 {reg}, {reg} offset:{off}', after=[bar1]))
    b(f'v_readfirstlane_b32 s{S_BEE}, {bee}')
    gate = []
    if edge:
        s_reg, m100 = SG(), T()
        b(f's_lshl_b32 {s_reg}, s5, 1')
        b(f's_or_b32 {s_reg}, {s_reg}, s6')
        b(f'v_mov_b32 {m100}, {f32(-100.0 * LOG2E)}')

        def region(tok):
            r, x = rowcol(b, tok)
            b(f'v_lshrrev_b32 {r}, 2, {r}')
            b(f'v_lshrrev_b32 {x}, 2, {x}')
            b(f'v_and_b32 {r}, s5, {r}')
            b(f'v_and_b32 {x}, s6, {x}')
            b(f'v_lshl_or_b32 {r}, {r}, 1, {x}')
            return r

        def mask(reg, ra, rb):
            t = T()
            b(f'v_cmp_ne_u32 vcc, {rb}, {ra}')
            b(f'v_cndmask_b32 {t}, 0, {m100}, vcc')
            gate.append(b(f'v_add_f32 v{reg}, v{reg}, {t}'))

        rq = [region(colr[j][0]) for j in range(3)]
        for j in range(3):
            mask(V_BEX + 2 * j, rq[j], s_reg)
            mask(V_BEX + 2 * j + 1, rq[j], s_reg)
        for jk in range(3):
            for r in range(4):
                tok = T()
                b(f'v_lshl_add_u32 {tok}, {g}, 2, {16 * jk + r}', after=[fin[-1]])
                rk = region(tok)
                for jq in range(3):
                    mask(V_BIAS + (jq * 3 + jk) * 4 + r, rq[jq], rk)
    for j in range(3):
        b(f'v_cndmask_b32 v{V_BEX + 2 * j}, {neg}, v{V_BEX + 2 * j}, {row0}')
        if j:
            b(f'v_mov_b32_dpp v{V_BEX + 1}, v{V_BEX + 2 * j + 1} quad_perm:[0,1,2,3] row_mask:{hex(1 << j)} bank_mask:0xf')

    zero = c.new('zero', 4)
    mf, rec, xe_rd = [], [], []
    b.cur = 0

    def frags(name, j, base, addr):
        out = []
        for s in range(6):
            aft = [mf[len(mf) + s - P['lead']]] if len(mf) >= P['lead'] else gate
            out.append(xread(b, f'{name}{s}', j, s, base, addr=addr, after=[bar0] + aft, prio=-500))
        return out

    def part(nm, w, j, sfx, xf):
        for jd in range(3):
            mf.extend(proj_chain(b, f'{nm}a{j}{jd}{sfx}', w, lambda s: f'%{xf}{s}', jd, nm == 'v'))
        if nm != 'v':
            sumsq(b, f'ss{nm}{j}{sfx}', [f'{nm}a{j}{jd}{sfx}' for jd in range(3)], f's{S_EPSQ}')

    def qk_record(j):
        qk_norm(b, j, 'e')
        qk_pack(b, j, 'e')
        ee, et = c.new(f'ee{j}', 4), T()
        for jd in range(3):
            for r in range(4):
                op = 'v_mul_f32' if jd == 0 and r == 0 else 'v_fmac_f32'
                b(f'{op} {ee}.0, %qa{j}{jd}e.{r}, %ka{j}{jd}e.{r}')
        for op in ('v_permlane32_swap_b32', 'v_permlane16_swap_b32'):
            b(f'v_mov_b32 {et}, {ee}.0')
            b(f'{op} {ee}.0, {et}')
            b(f'v_add_f32 {ee}.0, {ee}.0, {et}')
        x = b(f'v_add_f32 {ee}.0, s{S_BEE}, {ee}.0')
        for r in range(1, 4):
            b(f'v_mov_b32 {ee}.{r}, {neg}', after=[x])
        b(f'v_cndmask_b32 {ee}.0, {neg}, {ee}.0, {row0}')
        for text in (f'ds_write_b128 {qw[j]}, %kp{j}e', f'ds_write_b64 {qw[j]}, %tp{j}e.4:5 offset:48',
                     f'ds_write_b128 {qw[j]}, %qp{j}e offset:32', f'ds_write_b64 {qw[j]}, %tp{j}e.2:3 offset:72',
                     f'ds_write_b128 {ew[j]}, {ee} offset:192'):
            rec.append(b(text, after=freed))

    def v_record(j):
        for jd in range(3):
            for r in range(4):
                x = f'%va{j}{jd}e.{r}'
                b(f'{CVT} {x}, {x}, {x}')
            for r in (0, 2):
                o = (VE_S * r + 64 * jd) // 4
                rec.append(b(f'ds_write2_b32 {vw[j]}, %va{j}{jd}e.{r}, %va{j}{jd}e.{r + 1} offset0:{o} offset1:{o + VE_S // 4}', after=freed))

    for r in range(4):
        b(f'v_mov_b32 {zero}.{r}, 0', prio=-200, after=ch_rd[5][:1])
    for j in range(2):
        for text in (f'ds_write_b128 {qw[j]}, {zero} offset:16', f'ds_write_b64 {qw[j]}, {zero}.0:1 offset:56',
                     f'ds_write_b64 {qw[j]}, {zero}.0:1 offset:64'):
            rec.append(b(text, prio=-200, after=freed))
    XE = (xa0, xa1)
    tile0(c, edge)
    for jd in range(3):
        c.new(f'v0{jd}', 4)
        c.new(f'v1{jd}', 4)
    F = dict(dict(cfg, tail32=0, ow=0), **P['first'])
    if edge:
        xe_rd += frags('xe', 0, 0, XE)
        part('k', WK, 0, 'e', 'xe')
        xe_rd += frags('xg', 1, 0, XE)
        part('k', WK, 1, 'e', 'xg')
        part('q', WQ, 0, 'e', 'xe')
        qk_record(0)
        n0 = len(rec)
        part('q', WQ, 1, 'e', 'xg')
        qk_record(1)
        x0_rd = frags('xf0', 0, L_X, None)
        part('k', WK, 0, '', 'xf0')
        mf[-18].after.append(rec[n0 - P['hold0']])
        part('q', WQ, 0, '', 'xf0')
        mf[-18].after.append(rec[len(rec) - P['hold1']])
        qk_norm(b, 0)
        qk_pack(b, 0)
        part('v', WV, 0, '', 'xf0')
        for jd in range(3):
            scale_pack(b, f'va0{jd}', None, lambda e: f'%v0{jd}.{e}', 0)
        for j in range(2):
            xe_rd += frags('xh' if j else 'xi', j, 0, XE)
            part('v', WV, j, 'e', 'xh' if j else 'xi')
            v_record(j)
        bar2 = b('s_barrier', after=x_rest + fin + [barx, mf[-1]])
        x0_rd += later_tiles(b, F, True, mf, [bar2])
    else:
        bar2 = barx
        if not barr:
            barr = bar2 = b('s_barrier', after=x_rest + [barx])
        sreg[0] += sreg[0] & 1
        valid = f's[{sreg[0]}:{sreg[0] + 1}]'
        sreg[0] += 2
        t0, dw = T(), [T(), T()]
        b(f'v_add_u32 {t0}, 16, {cc}', prio=-250)
        b(f'v_cmp_gt_u32 {valid}, s{S_NP}, {t0}', prio=-250)
        negs = c.new('negs', 4)
        for r in range(4):
            b(f'v_mov_b32 {negs}.{r}, {neg}', prio=-200, after=ch_rd[5][:1])
        fill = []
        for j in range(2):
            b(f'v_cndmask_b32 {dw[j]}, {dum}, {ew[j]}, {row0}', prio=-250)
            fill.append(b(f'ds_write_b128 {ew[j]}, {negs} offset:192', prio=-200, after=freed))
        x0_rd, have, k = [], None, 0
        Wm = dict(q=WQ, k=WK, v=WV)

        def frag(xf, tl, s, q):
            ext = tl >= 3
            aft = [barr if tl in ready_late else bar0] + ([mf[min(q, len(mf) - 1)]] if q >= 0 and mf else [])
            r = xread(b, f'{xf}{s}', tl - 3 if ext else tl, s, 0 if ext else L_X, addr=XE if ext else None, after=aft, prio=-500)
            (xe_rd if ext else x0_rd).append(r)

        def acc(nm, tl, jd):
            return f'va{tl - 3}{jd}e' if tl >= 3 and nm == 'v' else f'{nm}a{tl}{jd}'

        def post(nm, tl):
            ext = tl >= 3
            j = tl - 3 if ext and nm == 'v' else tl
            t = b.cur
            b.cur = t - P['post']
            if nm == 'v':
                if ext:
                    v_record(j)
                else:
                    for jd in range(3):
                        scale_pack(b, f'va{j}{jd}', None, lambda e: f'%v{j // 2}{jd}.{e}', 2 * (j & 1))
            else:
                half_raw(b, j, nm)
            if nm == 'q':
                if ext:
                    half_dot(b, j, 2, half_regs(c, j, 'q'), half_regs(c, j, 'k'))
                for r in range(3 if ext else 2, 4):
                    b(f'v_mov_b32 %nb{j}.{r}, %nb{j}.0')
                half_norm(b, j)
                half_scale(b, j)
                if tl == 4:
                    for r in range(2):
                        b(f'v_cndmask_b32 %nr{j}.{r}, 1.0, %nr{j}.{r}, {valid}')
                half_check(b, j)
                if ext:
                    e, d = tl - 3, c.new(f'ed{tl}', 1)
                    b(f'v_mul_f32 {d}.0, %nr{j}.2, %rr{j}.0')
                    b(f'v_fma_f32 {d}.0, {d}.0, %nr{j}.1, s{S_BEE}')
                    rec.append(b(f'ds_write_b32 {dw[e]}, {d}.0 offset:192', after=[fill[e]]))
                    for text in (f'ds_write_b128 {qw[e]}, %kp{j}', f'ds_write_b64 {qw[e]}, %tp{j}.4:5 offset:48',
                                 f'ds_write_b128 {qw[e]}, %qp{j} offset:32', f'ds_write_b64 {qw[e]}, %tp{j}.2:3 offset:72'):
                        rec.append(b(text, after=freed))
            b.cur = t

        seq, runs = [tuple(x) for x in P['seq']], []
        for nm, tl in seq:
            if runs and runs[-1][0] == nm and len(runs[-1][1]) < P['grp']['kqv'.index(nm)] and not any(r[0] == nm for r in runs[:-1]):
                runs[-1][1].append(tl)
            else:
                runs.append((nm, [tl]))
        for nm, tiles in runs:
            lead = P['leads'][min(len(P['leads']) - 1, len(mf) // 90)]
            if len(tiles) == 1:
                tl = tiles[0]
                if tl != have:
                    k += 1
                    have, xf = tl, f'xs{k}_'
                    for s in range(6):
                        frag(xf, tl, s, len(mf) + s - lead)
                for jd in range(3):
                    mf.extend(proj_chain(b, acc(nm, tl, jd), Wm[nm], lambda s: f'%{xf}{s}', jd, nm == 'v'))
            else:
                have = None
                k += 1
                for s in range(6):
                    for tl in tiles:
                        xf = f'xs{k}_{tl}'
                        frag(xf, tl, s, len(mf) - P['glead'])
                        for jd in range(3):
                            a = c.new(acc(nm, tl, jd), 4)
                            ops = (f'%{xf}{s}', Wm[nm](jd, s)) if nm == 'v' else (Wm[nm](jd, s), f'%{xf}{s}')
                            mf.append(b(f'{M32} {a}, {ops[0]}, {ops[1]}, {a if s else 0}'))
                            b.cur += 1
            for tl in tiles:
                post(nm, tl)
    T1 = b.cur
    bare = b('s_barrier', after=xe_rd + fin + [bar2])
    for x in x_next:
        x.after.append(bare)

    b.cur = T1 + P['sum_prio']
    pw, pr, mw, mr = T(), T(), T(), T()
    x = b(f'v_xor_b32 {pr}, {TOG}, v{V_OR}', after=[ch_rd[16][0]])
    b(f'v_lshrrev_b32 {mw}, 2, {pr}')
    b(f'v_lshrrev_b32 {mr}, 8, {pr}')
    b(f'v_lshl_add_u32 {pw}, s{S_H}, 2, {pr}')
    b(f'v_add_u32 {mw}, {L_MEAN}, {mw}')
    b(f'v_lshlrev_b32 {mr}, 4, {mr}')
    b(f'v_add_u32 {mr}, {L_MEAN}, {mr}')
    blk = lambda t, jc: '{0}[{1}:{2}]'.format(wo_pair(t, jc)[0], wo_pair(t, jc)[1], wo_pair(t, jc)[1] + 1)
    hs = c.new('hs', 4)
    for r in range(4):
        b(f'v_or_b32 {hs}.{r}, v{V_SEL}, v{V_SEL + 1}', after=[ch_rd[16][0]])
        b(f'v_lshrrev_b32 {hs}.{r}, 16, {hs}.{r}' if r >= 2 else f'v_and_b32 {hs}.{r}, 0xffff, {hs}.{r}')
        b(f'v_lshl_or_b32 {hs}.{r}, {hs}.{r}, 16, {hs}.{r}')
    parts_ = []
    for p in (0, 1, 4, 2, 3, 5):
        d = c.new(f'ps{p}', 4)
        for jc in range(3):
            b(f'{M32} {d}, {hs}, {WO(jc, p)}, {d if jc else 0}')
    for k in range(3):
        m = c.new(f'pm{k}')
        for t in range(4 * k, 4 * k + 4):
            src = f'%ps{half[t][0]}.{half[t][1]}'
            if t & 3:
                b(f'v_mov_b32_dpp {m}, {src} quad_perm:[0,1,2,3] row_mask:{hex(1 << (t & 3))} bank_mask:0xf', prio=-150)
            else:
                b(f'v_mov_b32 {m}, {src}', prio=-150)
        parts_.append(b(f'ds_write_b32 {pw}, {m} offset:{L_PART[k]}'))
    bar3 = b('s_barrier', after=parts_ + [x for n in range(24) for x in ch_rd[n]] + [bare])
    means = []
    for k in range(3):
        d = c.new(f'pt{k}', 4)
        b(f'ds_read_b128 {d}, {pr} offset:{L_PART[k]}', after=[bar3], prio=-150)
        b(f'v_add_f32 {d}.0, {d}.0, {d}.1', prio=-150)
        b(f'v_add_f32 {d}.2, {d}.2, {d}.3', prio=-150)
        b(f'v_add_f32 {d}.0, {d}.0, {d}.2', prio=-150)
        b(f'v_mul_f32 {d}.0, {f32(-1 / 192)}, {d}.0', prio=-150)
        means.append(b(f'ds_write_b32 {mw}, {d}.0 offset:{256 * k}', prio=-150))
    wv = mf[len(mf) - P['m_at']]
    barm = b('s_barrier', after=x0_rd + x_next + [bar3, wv])
    advance(b, F, T1, barm)
    o_wr, marks = attention(b, F, edge, T1, mf, rec, [bar3], exm=qke0)
    b.cur = T1 + 100
    tm, cv = [], {}
    for t in range(12):
        mn = c.new(f'mn{t}', 4)
        aft = [means[t >> 2]] + ([cv[t - P['wo_lead']]] if t >= P['wo_lead'] else [])
        b(f'ds_read_b128 {mn}, {mr} offset:{64 * t}', after=aft, prio=-140)
        for jc in range(3):
            d = c.new(f'wr{t}_{jc}', 4)
            tm.append(b(f'{M16} {d}, {blk(t, jc)}, {eye}, {mn}'))
            bank, r = wo_pair(t, jc)
            pr_ = T1 + P['cv_prio']
            for k in range(2):
                if bank == 'v':
                    cv[t] = b(f'{CVT} v{r + k}, {d}.{2 * k}, {d}.{2 * k + 1}', prio=pr_)
                else:
                    b(f'{CVT} {d}.{2 * k}, {d}.{2 * k}, {d}.{2 * k + 1}', prio=pr_)
                    b(f'v_accvgpr_write_b32 a{r + k}, {d}.{2 * k}', prio=pr_)
    for r in (V_OR, V_OW, V_OT):
        b(f'v_xor_b32 v{r}, {TOG}, v{r}', prio=T1 + 300)
    b.cur = T1 + 150
    rd, ch = head_part(b, dict(cfg, cut=0) if edge else F, edge, after=[marks[P['h_at'] // 12][P['h_at'] % 12]] * 6)
    for r in rd:
        r.after.append(barm)
    mark(0)
    b(f's_mov_b32 s{S_IT}, 1')
    b(f's_sub_u32 s{S_POOL}, s{S_NP}, s{S_N}')
    b(f's_sub_u32 s{S_LAST}, s{S_N}, 1')
    b(f's_bfm_b32 s{S_MASK}, s{S_N}, 0')
    b(f's_mov_b32 s{S_SL}, 1')
    b(f's_mov_b32 s{S_SL + 1}, 2')
    b(f's_mov_b32 s{S_SL + 2}, 3')
    u0, u1 = f's{S_U}', f's{S_U + 1}'
    b(f's_and_b32 {u0}, s2, 0xf8')
    b(f's_add_u32 {u0}, {u0}, {247 * NFIX}')
    b(f's_mul_i32 {u1}, {u0}, 58255')
    b(f's_lshr_b32 {u1}, {u1}, 22')
    b(f's_mul_i32 s{S_JP}, {u1}, 72')
    b(f's_sub_u32 s{S_JP}, {u0}, s{S_JP}')
    b(f's_mul_i32 {u1}, {u1}, {7 * ROW}')
    b(f's_mul_i32 {u0}, s{S_JP}, 2688')
    b(f's_add_u32 {u0}, {u0}, {u1}')
    b(f's_add_u32 s{S_OFFP}, {u0}, {3 * ROW + 3 * 384}')
    mark(None)
    for (k, a), (_, e) in zip(spans, spans[1:]):
        d = P.get('defer', [0] * 7)[k] if k is not None else 0
        if d:
            for i in b.ins[a:e]:
                i.after.append(ch_rd[d - 1][0])
    b('s_barrier', after=o_wr + [barm])
    return b
```

```python
import bisect
import random
import re

TRANS = ('v_exp_', 'v_log_', 'v_rcp_', 'v_rsq_', 'v_sqrt_', 'v_sin_', 'v_cos_')
SCC_DEF = ('s_add_', 's_sub_', 's_and_', 's_or_', 's_xor_', 's_lshl_', 's_lshr_', 's_ashr_', 's_cmp_', 's_addc',
           's_subb', 's_min_', 's_max_', 's_andn2', 's_not_', 's_bfe_', 's_addk', 's_cmpk', 's_bitcmp')
SCC_USE = ('s_cselect', 's_cbranch_scc', 's_addc', 's_subb')

_REG = re.compile(r'^-?(?:abs\()?(%[A-Za-z_][A-Za-z0-9_]*(?:\.\d+(?::\d+)?)?|[vas]\d+|[vas]\[\d+:\d+\]|vcc|exec|exec_lo|exec_hi|m0|vcc_lo|vcc_hi)\)?$')
_SYM = re.compile(r'%([A-Za-z_][A-Za-z0-9_]*)(?:\.(\d+)(?::(\d+))?)?')


class Ctx:
    def __init__(self):
        self.size = {}
        self.phys = {}

    def new(self, name, n=1, phys=None):
        assert name not in self.size or self.size[name] == n, name
        self.size[name] = n
        if phys is not None:
            self.phys[name] = phys
        return '%' + name

    def keys(self, tok):
        m = _REG.match(tok)
        if not m:
            return []
        t = m.group(1)
        if t[0] == '%':
            m = _SYM.match(t)
            name = m.group(1)
            n = self.size[name]
            if m.group(2) is None:
                lo, hi = 0, n - 1
            else:
                lo = int(m.group(2))
                hi = int(m.group(3)) if m.group(3) else lo
            assert hi < n, tok
            return [('%', name, i) for i in range(lo, hi + 1)]
        if t in ('vcc', 'vcc_lo', 'vcc_hi'):
            return ['vcc']
        if t.startswith('exec'):
            return ['exec']
        if t == 'm0':
            return ['m0']
        if '[' in t:
            lo, hi = map(int, t[2:-1].split(':'))
            return [(t[0], i) for i in range(lo, hi + 1)]
        return [(t[0], int(t[1:]))]

    def subst(self, text):
        def rep(m):
            name = m.group(1)
            bank, base = self.phys[name]
            if m.group(2) is None:
                lo, hi = 0, self.size[name] - 1
            else:
                lo = int(m.group(2))
                hi = int(m.group(3)) if m.group(3) else lo
            if lo == hi:
                return f'{bank}{base + lo}'
            assert (base + lo) % 2 == 0, (text, name, base, lo)
            return f'{bank}[{base + lo}:{base + hi}]'
        return _SYM.sub(rep, text)


class Ins:
    def __init__(self, ctx, text, prio=None, after=(), full=False, grp=None, lat=None, tag=''):
        self.text = text
        self.prio = prio
        self.after = list(after)
        self.grp = grp
        self.lat = lat
        self.gap = None
        self.tag = tag
        self.defs, self.uses = [], []
        self.A = self.B = self.C = ()
        self.data = ()
        self.dpp_src = ()
        self.parse(ctx, full)

    def parse(self, ctx, full):
        s = self.text.split(';')[0].strip()
        op, _, rest = s.partition(' ')
        self.op = op
        parts = [p.strip() for p in rest.split(',')] if rest.strip() else []
        mods = ''
        ops = []
        for i, p in enumerate(parts):
            if ' ' in p:
                head, _, tail = p.partition(' ')
                ops.append(head)
                mods = tail + ' ' + ','.join(parts[i + 1:])
                break
            ops.append(p)
        K = [ctx.keys(o) for o in ops]
        flat = lambda L: [k for x in L for k in x]
        self.dur = 4
        if op.endswith(':'):
            self.kind = 'label'
        elif op.startswith('v_mfma'):
            self.kind = 'mfma'
            self.defs = K[0]
            self.A, self.B, self.C = K[1], K[2], K[3]
            self.uses = flat(K[1:])
        elif op.startswith('v_'):
            self.kind = 'valu'
            self.trans = op.startswith(TRANS)
            if self.trans or 'permlane' in op or op.startswith('v_mul_lo') or op.startswith('v_mul_hi'):
                self.dur = 8
            if 'permlane' in op:
                self.defs = flat(K)
                self.uses = flat(K)
                self.dpp_src = self.uses
            else:
                self.defs = K[0]
                self.uses = flat(K[1:])
                if op.startswith('v_fmac') or op.startswith('v_writelane'):
                    self.uses += K[0]
                if op.endswith('_dpp'):
                    if 'row_mask:0xf' not in mods and not full:
                        self.uses += K[0]
                    self.dpp_src = list(self.uses)
        elif op.startswith('ds_read') or op.startswith(('ds_bpermute', 'ds_permute')):
            self.kind = 'dsr'
            self.defs = K[0]
            self.uses = flat(K[1:])
        elif op.startswith('ds_write'):
            self.kind = 'dsw'
            self.uses = flat(K)
            self.dur = 4 + 4 * (len(self.uses) - 1)
        elif op.startswith('buffer_load'):
            if re.search(r'\blds\b', mods):
                self.kind = 'dma'
                self.uses = flat(K) + ['m0']
            else:
                self.kind = 'vld'
                self.defs = K[0]
                self.uses = flat(K[1:])
        elif op.startswith('buffer_atomic'):
            self.kind = 'vld'
            self.defs = K[0]
            self.uses = flat(K)
        elif op.startswith('global_load'):
            self.kind = 'vld'
            self.defs = K[0]
            self.uses = flat(K[1:])
        elif op.startswith('buffer_store'):
            self.kind = 'vst'
            self.uses = flat(K)
            self.data = K[0]
        elif op.startswith('s_load') or op.startswith('s_memtime') or op.startswith('s_memrealtime'):
            self.kind = 'smem'
            self.defs = K[0]
            self.uses = flat(K[1:])
        elif op == 's_waitcnt':
            self.kind = 'wait'
        elif op == 's_barrier':
            self.kind = 'bar'
        elif op == 's_nop':
            self.kind = 'nop'
            self.dur = 4 * (int(ops[0]) + 1)
        elif op.startswith('s_'):
            self.kind = 'salu'
            if op.startswith(('s_cmp', 's_cbranch', 's_branch', 's_endpgm', 's_setprio', 's_bitcmp')):
                self.uses = flat(K)
            else:
                self.defs = K[0]
                self.uses = flat(K[1:])
            if op.startswith(SCC_DEF):
                self.defs = self.defs + ['scc']
            if op.startswith(SCC_USE):
                self.uses = self.uses + ['scc']
        else:
            raise ValueError(self.text)
        if op.startswith('buffer_') and ops[-1].startswith('s'):
            self.dur = 8
        if self.kind in ('valu', 'mfma', 'dsr', 'dsw', 'dma', 'vld', 'vst'):
            self.uses = self.uses + ['exec']

    @property
    def states(self):
        if self.kind == 'label':
            return 0
        if self.kind == 'nop':
            return self.dur // 4
        return 1


MEM = ('dsr', 'dsw', 'dma', 'vld', 'vst')


def is_vreg(k):
    return isinstance(k, tuple) and k[0] in ('%', 'v', 'a')


def is_sreg(k):
    return k == 'vcc' or (isinstance(k, tuple) and k[0] == 's')


def need_states(p, c):
    n = 0
    pd, cu, cd = set(p.defs), set(c.uses), set(c.defs)
    raw = pd & cu
    if p.kind == 'mfma':
        if c.kind == 'mfma':
            if pd & (set(c.A) | set(c.B)):
                n = max(n, 8)
            if pd & set(c.C) and (list(p.defs) != list(c.C) or p.op != c.op):
                n = max(n, 6)
        elif (raw or pd & cd) and c.kind in ('valu',) + MEM:
            n = max(n, 8)
        if c.kind == 'valu' and set(p.C) & cd:
            n = max(n, 3)
    elif p.kind == 'valu':
        vraw = [k for k in raw if is_vreg(k)]
        sraw = [k for k in raw if is_sreg(k)]
        if c.kind == 'mfma' and vraw:
            n = max(n, 2)
        if p.op.startswith('v_dot') and (vraw or pd & cd) and c.kind in ('valu', 'mfma') + MEM:
            n = max(n, 3)
        if c.kind == 'valu':
            if vraw and p.trans and not c.trans:
                n = max(n, 1)
            if pd & set(c.dpp_src):
                n = max(n, 2)
            if vraw and c.op.startswith(('v_readfirstlane', 'v_readlane')):
                n = max(n, 1)
            if sraw:
                n = max(n, 4 if c.op.startswith(('v_readlane', 'v_writelane')) else 2)
        if c.kind in MEM and vraw and p.trans:
            n = max(n, 1)
        if c.kind in ('dma', 'vld', 'vst') and sraw:
            n = max(n, 5)
        if c.kind in ('salu', 'smem') and sraw:
            n = max(n, 2)
    elif p.kind == 'salu':
        if 'm0' in pd and c.kind == 'dma':
            n = max(n, 1)
    elif p.kind == 'vst':
        if len(p.data) >= 3 and set(p.data) & cd:
            n = max(n, 2)
    if p.kind in ('dsr', 'vld') and c.kind == 'valu' and pd & set(c.dpp_src):
        n = max(n, 2)
    return n


def pad_hazards(ctx, seq, pre=()):
    out = list(pre)
    base = len(out)
    added = 0
    for c in seq:
        if c.kind != 'label':
            gap = 0
            need = 0
            for p in reversed(out):
                if gap >= 9:
                    break
                need = max(need, need_states(p, c) - gap)
                gap += p.states
            if need > 0:
                out.append(Ins(ctx, f's_nop {need - 1}', tag='pad'))
                added += need
        out.append(c)
    return out[base:], added


class Timer:
    QUEUE = 28
    bar_cost = 0
    vm_cost = 0

    def __init__(self):
        self.t = 0
        self.vec = 0
        self.pipe = 0
        self.valu_end = -100
        self.mblock = 0
        self.dsblock = 0
        self.ldsq = 0
        self.salu_at = -100
        self.sblock = 0
        self.mop = 'v_mfma_f32_16x16x32_bf16'

    def when(self, i):
        k = i.kind
        if k == 'mfma':
            return max(self.t, self.vec, self.pipe + (4 if i.op[:19] != self.mop[:19] else 0), self.mblock)
        if k == 'valu':
            return max(self.t, self.vec)
        if k in ('dsr', 'dsw'):
            return max(self.t, self.vec, self.valu_end + 8, self.dsblock, self.ldsq - self.QUEUE)
        if k in MEM:
            return max(self.t, self.vec, self.valu_end + 8, self.salu_at + 8)
        if k == 'salu':
            return max(self.t, self.sblock)
        return self.t

    def issue(self, i):
        w = self.when(i)
        k = i.kind
        if k == 'label':
            return w
        if k == 'mfma':
            self.t, self.vec, self.pipe = w + 4, w + (4 if '16x16x16' in i.op else 8), w + 16
            self.mop = i.op
        elif k == 'valu':
            self.t = self.vec = self.valu_end = w + i.dur
            if any(is_sreg(d) for d in i.defs):
                self.sblock = w + 20
        elif k in MEM:
            self.t = self.vec = w + i.dur + (self.vm_cost if k in ('vst', 'dma') else 0)
            if k == 'vst':
                self.mblock = w + 4 + 4 * len(i.data)
            if k == 'dsr':
                self.ldsq = max(self.ldsq, w) + (16 if 'b128' in i.op or 'read2' in i.op else 8)
            if k == 'dsw':
                self.dsblock = w + {8: 32 if 'b32' in i.op else 20, 12: 32, 16: 44, 20: 56}[i.dur]
        else:
            self.t = w + i.dur + (self.bar_cost if k == 'bar' else 0)
            if k == 'salu':
                self.salu_at = w
        return w


class Block:
    def __init__(self, ctx, name, lds_lat=128):
        self.ctx = ctx
        self.name = name
        self.ins = []
        self.lds_lat = lds_lat
        self.cur = 0.0

    def __call__(self, text, **kw):
        i = Ins(self.ctx, text, **kw)
        if i.prio is None:
            i.prio = self.cur
        i.seq = len(self.ins)
        self.ins.append(i)
        return i

    def build_deps(self):
        lastdef, users = {}, {}
        n = len(self.ins)
        self.pred = [dict() for _ in range(n)]
        self.scc_users = {}
        if self.free_scc:
            cur = None
            for c in self.ins:
                if 'scc' in c.uses:
                    self.scc_users.setdefault(cur.seq, []).append(c)
                    c.uses = [k for k in c.uses if k != 'scc']
                    c.after.append(cur)
                c.sccdef = 'scc' in c.defs
                if c.sccdef:
                    cur = c
                    c.defs = [k for k in c.defs if k != 'scc']
        for c in self.ins:
            P = self.pred[c.seq]
            for k in c.uses:
                if k in lastdef:
                    P[lastdef[k].seq] = 'raw'
            for k in c.defs:
                if k in lastdef:
                    P.setdefault(lastdef[k].seq, 'waw')
                for u in users.get(k, ()):
                    if u is not c:
                        P.setdefault(u.seq, 'war')
            for a in c.after:
                assert a.seq != c.seq
                P.setdefault(a.seq, 'ord')
            for k in c.uses:
                users.setdefault(k, []).append(c)
            for k in c.defs:
                lastdef[k] = c
                users[k] = []
        for d, us in self.scc_users.items():
            group = {d} | {u.seq for u in us}
            for u in us:
                for p in self.pred[u.seq]:
                    if p not in group:
                        self.pred[d].setdefault(p, 'ord')

    def prepare(self):
        self.build_deps()
        n = len(self.ins)
        self.succ = [[] for _ in range(n)]
        self.haz = [[] for _ in range(n)]
        self.dsneed = [[] for _ in range(n)]
        self.vmneed = [[] for _ in range(n)]
        self.first = [0] * n
        for c in self.ins:
            for p, why in self.pred[c.seq].items():
                pi = self.ins[p]
                self.succ[p].append(c.seq)
                ns = need_states(pi, c)
                if ns:
                    self.haz[c.seq].append((p, ns))
                if pi.kind == 'dsr' and (why in ('raw', 'waw') or c.kind == 'bar'):
                    self.dsneed[c.seq].append(p)
                elif pi.kind == 'dsw' and c.kind == 'bar':
                    self.dsneed[c.seq].append(p)
                elif pi.kind == 'dsr' and c.kind == 'dma' and pi in c.after:
                    self.dsneed[c.seq].append(p)
                if self.auto_vm:
                    if pi.kind == 'vld' and why in ('raw', 'waw') and c.kind != 'vld':
                        self.vmneed[c.seq].append(p)
                    elif pi.kind == 'dma' and c.kind in ('dsr', 'bar') and pi in c.after:
                        self.vmneed[c.seq].append(p)
            for p, back in self.entry:
                self.first[c.seq] = max(self.first[c.seq], need_states(p, c) - back)
        cur, self.nuse = {}, []
        self.born = [[] for _ in range(n)]
        self.reads = [[] for _ in range(n)]
        self.live0 = 0
        first_use = []
        for c in self.ins:
            us = {k for k in c.uses if k[0] == '%'}
            for k in us:
                if k not in cur:
                    cur[k] = len(self.nuse)
                    self.nuse.append(0)
                    self.live0 += 1
                    first_use.append(k)
                self.nuse[cur[k]] += 1
                self.reads[c.seq].append(cur[k])
            for k in c.defs:
                if k[0] == '%' and k not in us:
                    cur[k] = len(self.nuse)
                    self.nuse.append(0)
                    self.born[c.seq].append(cur[k])
        for k in (first_use if self.cyclic else self.live_out):
            self.nuse[cur[k]] += 1
        self.prepared = True

    def schedule(self, inorder=False, noise=None):
        if not self.prepared:
            self.prepare()
        ctx, ins = self.ctx, self.ins
        n = len(ins)
        left = [len(p) for p in self.pred]
        prio = [(i.prio + (noise[i.seq] if noise else 0), i.seq) for i in ins]
        out = []
        state_of = [0] * n
        okstate = list(self.first)
        dsn = [-1] * n
        dsidx = {}
        vmn = [-1] * n
        vmidx = {}
        vm_at = []
        open_scc = []
        nuse = list(self.nuse)
        live = [self.live0]
        ready = []
        st = dict(n=0, covered=-1, stall=0, vm=self.vm_entry, vcov=-1, acc=None, ab=(None, None))
        tm = Timer()
        tm.bar_cost, tm.vm_cost, tm.QUEUE = self.costs
        ds = []
        done_at = []
        lat = self.lds_lat

        def make_ready(c):
            for p, ns in self.haz[c]:
                okstate[c] = max(okstate[c], state_of[p] + 1 + ns)
            for p in self.dsneed[c]:
                dsn[c] = max(dsn[c], dsidx[p])
            for p in self.vmneed[c]:
                vmn[c] = max(vmn[c], vmidx[p])
            bisect.insort(ready, prio[c])

        def emit(i):
            i.time = tm.issue(i)
            st['n'] += i.states
            out.append(i)

        def emit_wait(target, slack=0):
            j = target
            while j + 1 < len(ds) and done_at[j + 1] <= tm.t + slack:
                j += 1
            cnt = len(ds) - 1 - j
            if cnt > 15:
                cnt = 15
                j = len(ds) - 1 - 15
            done = done_at[j]
            emit(Ins(ctx, f's_waitcnt lgkmcnt({cnt})', tag='w'))
            if done > tm.t + slack:
                st['stall'] += done - tm.t
                tm.t = done
            st['covered'] = j

        def emit_vmwait(j):
            cnt = len(vm_at) - 1 - j
            assert cnt <= 63
            emit(Ins(ctx, f's_waitcnt vmcnt({cnt})', tag='w'))
            if vm_at[j] > tm.t:
                st['stall'] += vm_at[j] - tm.t
                tm.t = vm_at[j]
            st['vcov'] = j

        def commit(c):
            state_of[c.seq] = st['n']
            if self.auto_vm and c.kind in ('vld', 'dma', 'vst') and st['vm'] > tm.t:
                tm.t = st['vm']
            emit(c)
            if c.kind in ('vld', 'dma', 'vst'):
                vmidx[c.seq] = len(vm_at)
                d = max(c.time + (c.lat or self.vm_lat), self.vm_first)
                vm_at.append(max(d, vm_at[-1] + (self.vm_rate if c.kind == 'dma' else 8)) if vm_at else d)
            if c.kind == 'vld':
                st['vm'] = c.time + self.gap_ld
            if c.kind in ('dsr', 'dsw'):
                dsidx[c.seq] = len(ds)
                ds.append(c)
                d = c.time + (c.lat if c.lat is not None else lat)
                done_at.append(max(d, done_at[-1]) if done_at else d)
            elif c.kind == 'vst':
                st['vm'] = c.time + (c.gap or self.gap_st)
            elif c.kind == 'dma':
                st['vm'] = c.time + (self.gap_dma if len(vm_at) >= self.burst else 24)
            if c.kind == 'mfma':
                st['acc'], st['ab'] = c.defs, (c.A, c.B)
            for v in self.reads[c.seq]:
                nuse[v] -= 1
                live[0] -= nuse[v] == 0
            live[0] += sum(nuse[v] > 0 for v in self.born[c.seq])
            if self.fifo and c.kind in ('vld', 'dma', 'vst'):
                if len(vm_at) >= self.fifo:
                    st['vm'] = max(st['vm'], vm_at[len(vm_at) - self.fifo])
                elif len(vm_at) >= self.fifo - self.fifo_used:
                    st['vm'] = max(st['vm'], self.vm_first)
            if self.free_scc:
                if c in open_scc:
                    open_scc.remove(c)
                open_scc.extend(self.scc_users.get(c.seq, ()))
            ready.remove(prio[c.seq])
            for s in self.succ[c.seq]:
                left[s] -= 1
                if left[s] == 0:
                    make_ready(s)

        for i in range(n):
            if left[i] == 0:
                make_ready(i)
        while ready:
            if inorder:
                c = ins[min(r[1] for r in ready)]
                if dsn[c.seq] > st['covered']:
                    emit_wait(dsn[c.seq])
                if okstate[c.seq] > st['n']:
                    emit(Ins(ctx, f's_nop {okstate[c.seq] - st["n"] - 1}', tag='pad'))
                commit(c)
                continue
            cov, now = st['covered'], st['n']
            tv = max(tm.t, tm.vec)
            shadow = tm.t < tm.vec
            sal, bar, mf, mem, late, va, blocked, hz = [], [], [], [], [], [], [], False
            vblocked = []
            cand = ready
            if self.limit:
                cand = [r for r in ready if len(self.born[r[1]]) < 2 or live[0] + len(self.born[r[1]]) <= self.limit]
                if not any(ins[q].kind != 'bar' for _, q in cand):
                    cand = cand + [min((r for r in ready if r not in cand), key=lambda r: r[1], default=None)]
                    cand = sorted(r for r in cand if r)
            for _, q in cand:
                c = ins[q]
                if open_scc and c.sccdef and c not in open_scc:
                    continue
                if vmn[q] > st['vcov']:
                    vblocked.append(q)
                elif dsn[q] > cov:
                    blocked.append(q)
                elif okstate[q] > now:
                    hz = True
                else:
                    k = c.kind
                    if k == 'valu':
                        va.append(c)
                    elif k == 'mfma':
                        mf.append(c)
                    elif k in MEM:
                        if tm.when(c) <= tv and (k in ('dsr', 'dsw') or st['vm'] <= tv):
                            mem.append(c)
                        else:
                            late.append(c)
                    elif k == 'bar':
                        bar.append(c)
                    else:
                        sal.append(c)
            if self.sticky and len(mf) > 1 and (self.sticky > 1 or mf[0].prio > -800):
                nxt = [c for c in mf if c.C == st['acc'] and c.op == tm.mop]
                if not nxt and self.share:
                    nxt = [c for c in mf if (c.A == st['ab'][0] or c.B == st['ab'][1]) and c.prio - mf[0].prio <= self.share]
                if nxt:
                    mf = nxt
            if self.ends and mf and mf[0].C == st['acc']:
                mem = [c for c in mem if c.kind != 'vst' and c.dur <= 8]
            want = [dsn[q] for q in blocked if done_at[dsn[q]] <= tm.t + self.slack]
            if self.auto_vm:
                vw = [vmn[q] for q in vblocked if vm_at[vmn[q]] <= tm.t]
                if vw:
                    emit_vmwait(max(vw))
                    continue
                if not mf:
                    if bar:
                        commit(bar[0])
                        continue
                    if want:
                        emit_wait(min(want), self.slack)
                        continue
                    go = [c for c in late if (c.kind in ('dsr', 'dsw') and tm.dsblock <= tv + 8) or (c.kind not in ('dsr', 'dsw') and st['vm'] <= tv + 8)]
                    best = min(mem + go + va + sal, key=lambda c: prio[c.seq], default=None)
                    if best is not None and not mem:
                        if best.kind in MEM and sal:
                            best = sal[0]
                        commit(best)
                        continue
            if shadow:
                if bar:
                    commit(bar[0])
                    continue
                if want:
                    emit_wait(min(want), self.slack)
                    continue
                if sal and tm.when(sal[0]) <= tm.t and not (mem and mem[0].kind not in ('dsr', 'dsw') and sal[0].kind == 'salu'):
                    commit(sal[0])
                    continue
                j = cov + 1
                while j < len(ds) and done_at[j] <= tm.t and ds[j].kind != 'dsr':
                    j += 1
                if j < len(ds) and done_at[j] <= tm.t:
                    emit_wait(j)
                    continue
            if mf and tm.when(mf[0]) <= tv:
                if va and mf[0].prio >= 0 and tv < tm.pipe + self.cadence:
                    commit(va[0])
                else:
                    commit(mf[0])
                continue
            if not mf and tm.pipe <= tv:
                wm = [dsn[q] for q in blocked if ins[q].kind == 'mfma' and done_at[dsn[q]] <= tm.t + self.slack]
                if wm:
                    emit_wait(min(wm), self.slack)
                    continue
            room = (tm.when(mf[0]) - tv) if mf else 1000
            if mem:
                fit = [c for c in mem if c.dur <= room]
                if room >= 8 and mem[0].dur > 4:
                    commit(mem[0])
                    continue
                if fit:
                    commit(fit[0])
                    continue
                if room >= 8:
                    commit(mem[0])
                    continue
            if va:
                fit = [c for c in va if c.dur <= room]
                if fit:
                    c = fit[0]
                    if room == 8 and c.dur == 4:
                        eights = [x for x in fit if x.dur == 8]
                        if eights and len(fit) - len(eights) == 1:
                            follow = any(left[s] == 1 and ins[s].kind == 'valu' and ins[s].dur == 4 and not self.haz[s]
                                         for s in self.succ[c.seq])
                            if not follow:
                                c = eights[0]
                    commit(c)
                    continue
                if not mf:
                    commit(va[0])
                    continue
            if sal and (not mf or tm.when(sal[0]) + 4 <= tm.when(mf[0])):
                commit(sal[0])
                continue
            if mf:
                commit(mf[0])
                continue
            if want:
                emit_wait(min(want), self.slack)
                continue
            if bar:
                commit(bar[0])
                continue
            if hz:
                emit(Ins(ctx, 's_nop 0', tag='pad'))
                continue
            opts = [(max(tm.when(c), st['vm'] if c.kind not in ('dsr', 'dsw') else 0), 0, c) for c in late[:1]]
            opts += [(done_at[dsn[q]], 1, dsn[q]) for q in blocked]
            opts += [(vm_at[vmn[q]], 2, vmn[q]) for q in vblocked]
            _, how, x = min(opts, key=lambda o: o[:2])
            (commit, emit_wait, emit_vmwait)[how](x)
        assert not any(left), 'dependency cycle'
        self.open_reads = [x for x in ds[st['covered'] + 1:] if x.kind == 'dsr']
        self.out = out
        self.cycles = max(tm.t, tm.vec)
        self.stall = st['stall']
        self.vm_exit = st['vm'] - self.cycles
        return out

    prepared = False
    slack = 0
    gap_st = 0
    gap_dma = 0
    vm_entry = 0
    auto_vm = False
    limit = 0
    live_out = ()
    cyclic = False
    fifo = 0
    fifo_used = 0
    cadence = 0
    sticky = 0
    ends = 0
    share = 0
    costs = (0, 0, 28)
    burst = 0
    free_scc = False
    gap_ld = 0
    vm_lat = 700
    vm_first = 0
    vm_rate = 0
    entry = ()


def occupancy(ctx, seq, cyclic, live_out=(), live_in=()):
    n = len(seq)
    N = 2 * n
    full = (1 << N) - 1
    occ = {}

    def mark(k, a, b):
        m = ((1 << (b - a + 1)) - 1) << a
        m = (m & full) | (m >> N if cyclic else 0)
        occ[k] = occ.get(k, 0) | m

    D = [[k for k in i.defs if k[0] == '%'] for i in seq]
    Us = [[k for k in i.uses if k[0] == '%'] for i in seq]
    live = set(live_out)
    if cyclic:
        for p in range(n - 1, -1, -1):
            live.difference_update(D[p])
            live.update(Us[p])
    end = {k: N - 1 for k in live}
    nxt = {}
    for p in range(n - 1, -1, -1):
        i = seq[p]
        early = i.kind in ('mfma', 'dsr', 'vld')
        far = 0
        if i.kind in ('dsr', 'vld'):
            far = min([first for first in (nxt.get(k) for k in D[p]) if first is not None], default=N - 1) if D[p] else 0
        for k in D[p]:
            a = 2 * p + (0 if early else 1)
            e = max(end.pop(k, 0), 2 * p + 1, far)
            if i.kind == 'mfma':
                e = max(e, 2 * (p + 9))
            mark(k, a, e)
        for k in Us[p]:
            e = 2 * p
            if i.kind == 'vst' and k in i.data:
                e = 2 * (p + 3)
            elif i.kind == 'mfma' and k in i.C:
                e = 2 * (p + 4)
            if k in end:
                end[k] = max(end[k], e)
            else:
                end[k] = e
            nxt[k] = 2 * p
    for k, e in end.items():
        mark(k, 0, e)
    if not cyclic:
        extra = set(end) - set(live_in)
        assert not extra, f'undefined at block entry: {sorted(extra)[:8]}'
    return occ, set(end)


def pressure(occ, N, keep=lambda k: True):
    diff = [0] * (N + 1)
    for k, m in occ.items():
        if not keep(k):
            continue
        edges = m ^ (m << 1)
        sign = 1
        while edges:
            low = edges & -edges
            diff[low.bit_length() - 1] += sign
            sign = -sign
            edges ^= low
    out, run = [], 0
    for x in range(N):
        run += diff[x]
        out.append(run)
    return out


def allocate(ctx, seq, pool, cyclic, live_out=(), live_in=(), tries=400, seed=0):
    occ, entry = occupancy(ctx, seq, cyclic, live_out, live_in)
    names = sorted({k[1] for k in occ})
    N = 2 * len(seq)
    poolset = set(pool)
    fixed = {r: 0 for r in pool}
    todo = []
    for nm in names:
        if nm in ctx.phys:
            bank, base = ctx.phys[nm]
            if bank == 'v':
                for e in range(ctx.size[nm]):
                    if base + e in poolset:
                        m = occ.get(('%', nm, e), 0)
                        assert not fixed[base + e] & m, f'pinned overlap {nm}'
                        fixed[base + e] |= m
        else:
            todo.append(nm)
    press = pressure(occ, N, lambda k: k[1] in todo or (ctx.phys[k[1]][0] == 'v' and ctx.phys[k[1]][1] + k[2] in poolset))
    masks = {nm: [occ.get(('%', nm, e), 0) for e in range(ctx.size[nm])] for nm in todo}
    length = {nm: sum(bin(m).count('1') for m in masks[nm]) for nm in todo}

    union = {}
    for nm in todo:
        m = 0
        for x in masks[nm]:
            m |= x
        union[nm] = m
    full = (1 << N) - 1
    peak = press.index(max(press))
    rng = random.Random(seed)
    for t in range(tries):
        rot = (peak if t % 3 == 0 else rng.randrange(N)) if cyclic else 0
        jit = 0 if t == 0 else rng.choice((0, 4, 16, 60))

        def start(nm):
            m = union[nm]
            m = ((m >> rot) | (m << (N - rot))) & full
            return (m & -m).bit_length() + rng.random() * jit

        order = sorted(todo, key=lambda nm: (start(nm), -ctx.size[nm], -length[nm]))
        busy = dict(fixed)
        res = {}
        ok = True
        mode = t % 4
        for nm in order:
            sz = ctx.size[nm]
            mk = masks[nm]
            opts = [b for b in pool if (sz == 1 or b % 2 == 0)
                    and all(busy.get(b + e, full) & mk[e] == 0 and (b + e) in poolset for e in range(sz))]
            if not opts:
                ok = False
                break
            u = union[nm]
            if sz >= 4:
                opts = [b for b in opts if (b + sz - pool[0]) % 4 == 0] or opts
                if mode & 1:
                    b = max(opts, key=lambda b: sum(bin(busy[b + e]).count('1') for e in range(sz)))
                else:
                    b = opts[0]
            else:
                def mates(b):
                    q = pool[0] + (b - pool[0]) // 4 * 4
                    return sum(bin(busy.get(r, full) & u).count('1') for r in range(q, q + 4))
                b = max(opts, key=mates) if mode & 2 or True else opts[-1]
            res[nm] = b
            for e in range(sz):
                busy[b + e] |= mk[e]
        if ok:
            for nm, b in res.items():
                ctx.phys[nm] = ('v', b)
            return max(press), press, entry
    raise RuntimeError(f'allocation failed, max pressure {max(press)} of {len(pool)}')


def physical(ctx, seq):
    out = []
    for i in seq:
        j = Ins(ctx, ctx.subst(i.text), tag=i.tag)
        out.append(j)
    return out


def estimate(seq):
    tm = Timer()
    for i in seq:
        i.time = tm.issue(i)
    return max(tm.t, tm.vec)


def chain_count(seq):
    prev, n = None, 0
    for i in seq:
        if i.kind == 'mfma':
            if prev is not None:
                if list(prev.defs) == list(i.C):
                    n += i.time - prev.time == 16
                else:
                    n += prev.A == i.A or prev.B == i.B
            prev = i
    return n


def fix_vmcnt(ctx, seq):
    w = [p for p, i in enumerate(seq) if i.tag == 'vmw']
    assert len(w) == 1 and not any(i.kind in ('dma', 'vld') for i in seq[:w[0]])
    seq[w[0]].text = f's_waitcnt vmcnt({sum(i.kind == "vst" for i in seq[:w[0]])})'
```

```python
from parts import *


class Rec:
    def __init__(self, ctx):
        self.ctx = ctx
        self.cur = 0
        self.items = []

    def __call__(self, text, **kw):
        self.items.append((text, kw))


def tile0(ctx, safe, exm=False):
    xf = lambda s: f'%xf0{s}'
    for s in range(6):
        ctx.new(f'xf0{s}', 4)
    m = Rec(ctx)
    for nm, w, xa in (('ka', WK, False), ('qa', WQ, False), ('va', WV, True)):
        for jd in range(3):
            proj_chain(m, f'{nm}0{jd}', w, xf, jd, xa)
    v = Rec(ctx)
    need = [6 * (k // 4 + 1) for k in range(24)]
    if safe:
        sumsq(v, 'ssk0', [f'ka0{jd}' for jd in range(3)], f's{S_EPSQ}')
        sumsq(v, 'ssq0', [f'qa0{jd}' for jd in range(3)], f's{S_EPSQ}')
        qk_norm(v, 0)
        qk_pack(v, 0)
        need += [99] * (len(v.items) - 24)
    else:
        half_raw(v, 0, 'k')
        half_raw(v, 0, 'q')
        half_extra(v, 0, 'k', exm)
        half_extra(v, 0, 'q', exm)
        half_norm(v, 0, not exm)
        half_scale(v, 0)
        half_check(v, 0)
        need += [99] * (len(v.items) - 24)
    return m.items, v.items, need


def head_part(b, cfg, safe, after=()):
    m, v, need = tile0(b.ctx, safe)
    hm, cut = cfg['hm'], cfg['cut']
    assert cut <= len(v) and (cut == 0 or need[cut - 1] < hm)
    rd = []
    for s in range(6):
        aft = [after[s]] if after else []
        rd.append(xread(b, f'xf0{s}', 0, s, L_X, after=aft, prio=-500))
    ch = []
    for text, kw in m[:hm]:
        ch.append(b(text, **kw))
        b.cur += 0.01
    b.cur += cfg['head_prio']
    for text, kw in v[:cut]:
        b(text, **kw)
    return rd, ch


def norm_prio(cfg, j):
    return -1000 if cfg['norm_at'][j] < 0 else 54 * j + 36 + 6 * cfg['norm_at'][j] - 0.5


def front_part(b, cfg, safe, mf):
    c = b.ctx
    m0, v0, _ = tile0(c, safe, cfg['exm'])
    if not safe and not cfg['exm']:
        b(f'ds_read_b128 %eb, v{V_QKE} offset:32', prio=-550)
        b(f'ds_read2_b64 %ec, v{V_QKE} offset0:6 offset1:9', prio=-550)
        b(f'ds_read_b128 %ea, v{V_QKE}', prio=-550)
        b(f'ds_read_b32 %tx, v{V_VE} offset:192', prio=-300)
        b(f'v_mov_b32_dpp %tx, v{V_BEX + 1} quad_perm:[0,1,2,3] row_mask:0x7 bank_mask:0xf', prio=10)
    for jd in range(3):
        c.new(f'v0{jd}', 4)
        c.new(f'v1{jd}', 4)
    b.cur = cfg['hm']
    for text, kw in m0[cfg['hm']:]:
        mf.append(b(text, **kw))
        b.cur += 1
    for k, (text, kw) in enumerate(v0):
        if k >= cfg['cut']:
            if text.startswith(H32):
                kw = dict(prio=norm_prio(cfg, 0))
            b(text, **dict(dict(prio=16 if k < (29 if safe else 31 if cfg['exm'] else 41) else 36), **kw))
    b.cur = 20
    for jd in range(3):
        scale_pack(b, f'va0{jd}', None, lambda e: f'%v0{jd}.{e}', 0)
    b.cur = 54


def lds_write(b, addr, t, n, off, mode, after=()):
    w = min(n, 4 >> mode)
    return [b(f'ds_write_b{32 * w} v{addr}, {t}.{k}' + (f':{k + w - 1}' if w > 1 else '') + f' offset:{off + 4 * k}', prio=-100, after=after)
            for k in range(0, n, w)]


def barrier(b, after, step=1):
    out = []
    for k in range(3 * step + 1):
        out.append(b('s_barrier', after=after if k == 0 else [out[-1]], tag='barx' if k % max(1, step) else f'bar{k // max(1, step)}', prio=-2000))
    return out


def later_tiles(b, cfg, safe, mf, gate=()):
    c = b.ctx
    LEAD = cfg['lead']
    xrd = []
    for j in range(1, 3):
        xf = lambda s: f'%xf{j}{s}'
        for s in range(6):
            k = len(mf) + s - LEAD
            xrd.append(xread(b, f'xf{j}{s}', j, s, L_X, after=list(gate) + ([mf[min(k, len(mf) - 1)]] if k >= 0 else []), prio=-500))
        for jd in range(3):
            mf += proj_chain(b, f'ka{j}{jd}', WK, xf, jd, False)
        if safe:
            sumsq(b, f'ssk{j}', [f'ka{j}{jd}' for jd in range(3)], f's{S_EPSQ}')
        else:
            half_raw(b, j, 'k')
            half_extra(b, j, 'k', cfg['exm'])
        for jd in range(3):
            mf += proj_chain(b, f'qa{j}{jd}', WQ, xf, jd, False)
        t = b.cur
        b.cur = t - 20
        if safe:
            sumsq(b, f'ssq{j}', [f'qa{j}{jd}' for jd in range(3)], f's{S_EPSQ}')
            qk_norm(b, j)
            b.cur = t
            qk_pack(b, j)
        else:
            half_raw(b, j, 'q')
            half_extra(b, j, 'q', cfg['exm'])
            half_norm(b, j, not cfg['exm'], norm_prio(cfg, j))
            b.cur = t
            half_scale(b, j)
            half_check(b, j)
        for jd in range(3):
            mf += proj_chain(b, f'va{j}{jd}', WV, xf, jd, True)
            t = b.cur
            b.cur = t - 30
            if j < 2:
                scale_pack(b, f'va{j}{jd}', None, lambda e: f'%v0{jd}.{e}', 2 * j)
            else:
                scale_pack(b, f'va{j}{jd}', None, lambda e: f'%v1{jd}.{e}', 0)
            b.cur = t
    return xrd


def advance(b, cfg, T1, barm, claim=None):
    b(f'v_xor_b32 v{V_XA0}, {TOG}, v{V_XA0}', prio=T1 + cfg['upd'][0])
    b(f'v_xor_b32 v{V_XA1}, {TOG}, v{V_XA1}', prio=T1 + cfg['upd'][0])
    b(f's_add_u32 s{S_T0}, s{S_IT}, 2')
    point(b, S_SRDX, S_PX, S_OFF, f's_cmp_le_u32 s{S_T0}, s{S_LAST}' if claim else f's_cmp_lt_u32 s{S_T0}, s{S_N}')
    dma = []
    for i in range(5):
        if i == 4:
            b(f's_mov_b32 m0, s{S_M0B}')
        else:
            b(f's_add_u32 m0, s{S_M0A}, {4096 * i}')
        dma.append(b(f'buffer_load_dwordx4 v{V_DMA + i}, s[{S_SRDX}:{S_SRDX + 3}], 0 offen{cfg["ld_flags"]} lds', after=[barm], prio=-400, tag=f'dma{i}'))
    b(f's_xor_b32 s{S_M0A}, s{S_M0A}, {TOG}')
    b(f's_xor_b32 s{S_M0B}, s{S_M0B}, s{S_M0T}')
    for k in range(4, 0, -1):
        b(f's_mov_b32 s{S_OFF + k}, s{S_OFF + k - 1}')
    b(f's_add_u32 s{S_J}, s{S_J}, s{S_DJ}')
    b(f's_add_u32 s{S_OFF}, s{S_OFF}, s{S_DOFF}')
    b(f's_cmp_ge_u32 s{S_J}, 72')
    b(f's_cselect_b32 s{S_T0}, 72, 0')
    b(f's_cselect_b32 s{S_T1}, s{S_DCAR}, 0')
    b(f's_sub_u32 s{S_J}, s{S_J}, s{S_T0}')
    b(f's_add_u32 s{S_OFF}, s{S_OFF}, s{S_T1}')
    if not claim:
        return None
    k, o, v, t, u = (f's{S_U + q}' for q in range(5))
    rd = []
    if claim == 'repeat':
        b(f's_ff1_i32_b32 {k}, s{S_REM}')
    else:
        r = b.ctx.new('clr')
        rd = [b(f'ds_read_u16 {r}, v{V_PR} offset:512', after=[barm], prio=-280, tag='clr')]
        b(f'v_readfirstlane_b32 {k}, {r}', prio=-700)
    b(f's_mul_i32 {o}, {k}, 2688')
    b(f's_add_u32 {o}, {o}, s{S_OFFP}')
    b(f's_add_u32 {t}, {k}, s{S_JP}')
    b(f's_cmp_ge_u32 {t}, 72')
    b(f's_cselect_b32 {t}, s{S_DCAR}, 0')
    b(f's_add_u32 {o}, {o}, {t}')
    b(f's_mov_b32 s{S_SL}, s{S_SL + 1}')
    b(f's_mov_b32 s{S_SL + 1}, s{S_SL + 2}')
    b(f's_add_u32 {t}, {k}, {NFIX}')
    b(f's_add_u32 s{S_T0}, s{S_IT}, 3')
    b(f's_cmp_lt_u32 {k}, s{S_POOL}')
    b(f's_cselect_b32 {v}, 1, 0')
    b(f's_cselect_b32 {o}, {o}, 0')
    b(f's_cmp_lt_u32 s{S_T0}, s{S_N}')
    b(f's_cselect_b32 s{S_OFF}, s{S_OFF}, {o}')
    b(f's_cselect_b32 s{S_SL + 2}, s{S_T0}, {t}')
    b(f's_cselect_b32 {v}, 0, {v}')
    b(f's_cselect_b32 {u}, 0, 1')
    if claim == 'repeat':
        b(f's_sub_u32 {t}, s{S_REM}, {u}')
        b(f's_and_b32 s{S_REM}, s{S_REM}, {t}')
    else:
        b(f's_add_u32 {t}, {k}, 1')
        b(f's_mul_i32 {t}, {t}, {u}')
        b(f's_cmp_lt_u32 {t}, s{S_POOL}')
        b(f's_cselect_b32 s{S_POOL}, s{S_POOL}, 0')
        b(f's_add_u32 {t}, s{S_IT}, 4')
        b(f's_cmp_ge_u32 {t}, s{S_N}')
        b(f's_cselect_b32 s{S_SRDC + 2}, s{S_POOL}, 0')
        b(f'v_mov_b32 v{V_CL}, 1', prio=-410, tag='w0')
        b(f'buffer_atomic_add v{V_CL}, v{V_DMA}, s[{S_SRDC}:{S_SRDC + 3}], 0 offen sc0 sc1', prio=-390, tag='w0')
    b(f's_lshl_b32 {t}, {v}, s{S_SL + 2}')
    b(f's_or_b32 s{S_MASK}, s{S_MASK}, {t}')
    b(f's_add_u32 s{S_LAST}, s{S_LAST}, {v}')
    return rd


def attention(b, cfg, safe, T1, mf, rec_after=(), wr_after=(), step=(QKE_S, VE_S, 16), exm=None):
    c = b.ctx
    e_at = mf[len(mf) - cfg['e_lead']]
    exm = exm or (f'v{V_QKE}' if safe else None)
    ea, eb, ec = c.new('ea', 4), c.new('eb', 4), c.new('ec', 4)
    tx = c.new('tx', 1)
    exk = lambda j: f'%ex{j}.0' if exm else f'%nr{j}.2'
    if exm:
        for t, off in ((ea, 0), (eb, 16), (ec, 48)):
            b(f'ds_read_b128 {t}, {exm} offset:{off}', after=[e_at] + list(rec_after), prio=-300)
        b(f'ds_read_b32 {tx}, v{V_VE} offset:192', after=[e_at] + list(rec_after), prio=-299)
    for jd in range(3):
        b(f'ds_read2_b32 %v1{jd}.2:3, v{V_VE} offset0:{16 * jd} offset1:{16 * jd}', after=[mf[len(mf) - cfg['ve_lead']]] + list(rec_after), prio=-298)
    if step:
        b(f'v_add_u32 v{V_QKE}, {step[0]}, v{V_QKE}', prio=T1 + cfg['upd'][1])
        b(f'v_add_u32 v{V_VE}, {step[1]}, v{V_VE}', prio=T1 + cfg['upd'][1])

    A = cfg['att']
    for j in range(3 if exm else 0):
        b.cur = T1 + A['ex'][j]
        ex = c.new(f'ex{j}', 4)
        b(f'{H32} {ex}, {ea}, %qp{j}, {vr(V_BEX + 2 * j, 4)}')
        b(f'{H32} {ex}, {eb}, %kp{j}, {ex}')
        b(f'{H32} {ex}, {ec}, %tp{j}.2:5, {ex}')
        b(f'v_mov_b32_dpp {tx}, {ex}.1 quad_perm:[0,1,2,3] row_mask:{hex(1 << j)} bank_mask:0xf')
    if exm and not safe:
        b(f'v_mov_b32 v{V_ML}, 0')
    b.cur = T1 + A['tx']
    if safe:
        mx, mt = c.new('mxx', 1), c.new('mtx', 1)
        b(f'v_mov_b32 {mx}, {tx}')
        for ctl in ('quad_perm:[1,0,3,2]', 'quad_perm:[2,3,0,1]', 'row_half_mirror', 'row_mirror'):
            b(f'v_max_f32_dpp {mx}, {mx}, {mx} {ctl} row_mask:0xf bank_mask:0xf')
        group_max(b, mx, mt)
        b(f'v_sub_f32 {tx}, {tx}, {mx}')
    b(f'v_exp_f32 {tx}, {tx}')
    b(f'{CVT} {tx}, {tx}, {tx}')
    pw = b(f'ds_write_b16 v{V_PW}, {tx}', prio=-200)

    o_wr = []
    marks = {}

    def s_tile(jq, after):
        if cfg['tail32']:
            for e in range(2):
                b(f'v_mov_b32 %tp{jq}.{e}, 0', after=[marks[jq - 1][0]] if jq else [e_at], prio=-50)
        for jk in range(3):
            s = c.new(f's{jq}{jk}', 4)
            parts_ = [f'%kp{jk}, %qp{jq}'] + ([f'%tp{jk}.2:5, %tp{jq}.0:3'] if cfg['tail32'] else [])
            for n, ab in enumerate(parts_[::-1] if jk == 1 else parts_):
                b(f'{H32} {s}, {ab}, {s if n else BIAS(jq, jk)}', after=[after[jk]] if after and not n else [])
        for jk in range(0 if cfg['tail32'] else 3):
            b(f'{H16} %s{jq}{jk}, %tp{jk}.4:5, %tp{jq}.2:3, %s{jq}{jk}')

    def softmax(jq):
        p0 = c.new(f'p0{jq}', 4)
        regs = [f'%s{jq}{jk}.{r}' for jk in range(3) for r in range(4)] + [exk(jq)]
        if safe:
            mx, mt = c.new(f'mx{jq}', 1), c.new(f'mt{jq}', 1)
            b(f'v_max3_f32 {mx}, {regs[12]}, {regs[0]}, {regs[1]}')
            for k in range(2, 12, 2):
                b(f'v_max3_f32 {mx}, {mx}, {regs[k]}, {regs[k + 1]}')
            group_max(b, mx, mt)
        mk = []
        for jk in range(3):
            for r in (0, 2):
                for q in (r, r + 1):
                    x = f'%s{jq}{jk}.{q}'
                    if safe:
                        b(f'v_sub_f32 {x}, {x}, {mx}')
                    mk.append(b(f'v_exp_f32 {x}, {x}'))
                d = f'{p0}.{2 * jk + r // 2}' if jk < 2 else f'v{V_P1 + r // 2}'
                b(f'{CVT} {d}, %s{jq}{jk}.{r}, %s{jq}{jk}.{r + 1}')
        x = exk(jq)
        if safe:
            b(f'v_sub_f32 {x}, {x}, {mx}')
        b(f'v_exp_f32 {x}, {x}')
        b(f'{CVT} v{V_P1 + 3}, {x}, 0')
        marks[jq] = mk

    def pv(jq):
        la = c.new(f'la{jq}', 4)
        p0, p1 = f'%p0{jq}', vr(V_P1, 4)
        first = b(f'{M32} {la}, {vr(V_ONES, 4)}, {p1}, 0')
        b(f'{M32} {la}, {vr(V_ONES, 4)}, {p0}, {la}')
        for jd in range(3):
            oa = c.new(f'oa{jq}{jd}', 4)
            pair = ((f'%v1{jd}', p1), (f'%v0{jd}', p0))
            for n, (x, y) in enumerate(pair[::-1] if SNAKE[0] and jd != 1 else pair):
                b(f'{M32} {oa}, {x}, {y}, {oa if n else 0}', after=[] if n else [first])

    def o_post(jq):
        la = f'%la{jq}.1'
        b(f'v_rcp_f32 {la}, %la{jq}.0')
        if not safe:
            b(f'v_max3_u32 v{V_ML}, v{V_ML}, {la}, %la{jq}.0')
        op0, op1 = c.new(f'op0{jq}', 4), c.new(f'op1{jq}', 2)
        for jd in range(2):
            scale_pack(b, f'oa{jq}{jd}', la, lambda e: f'{op0}.{e}', 2 * jd)
        n0 = len(o_wr)
        o_wr.extend(lds_write(b, V_OW, op0, 4, L_O + jq * 6144, cfg['ow'], wr_after))
        scale_pack(b, f'oa{jq}2', la, lambda e: f'{op1}.{e}', 0)
        o_wr.extend(lds_write(b, V_OT, op1, 2, L_O + jq * 6144 + 4096, cfg['ow'], wr_after))
        marks['w', jq] = o_wr[n0:]

    def extra_pv(after):
        pa0, pa1 = c.new('pa0', 4), c.new('pa1', 4)
        b(f'ds_read_b128 {pa0}, v{V_PR}', after=[pw] + after + list(rec_after), prio=-250)
        b(f'ds_read_b128 {pa1}, v{V_PR} offset:64', after=[pw] + after + list(rec_after), prio=-250)
        lx = c.new('lx', 4)
        b(f'{M32} {lx}, {pa0}, {vr(V_ONES, 4)}, 0')
        b(f'{M32} {lx}, {pa1}, {vr(V_ONES, 4)}, {lx}')
        for jd in range(3):
            ox = c.new(f'ox{jd}', 4)
            pair = ((pa0, f'%v0{jd}'), (pa1, f'%v1{jd}'))
            for n, (x, y) in enumerate(pair[::-1] if SNAKE[0] and jd != 1 else pair):
                b(f'{M32} {ox}, {x}, {y}, {ox if n else 0}')
        b.cur = T1 + A['xo']
        b(f'v_rcp_f32_dpp {lx}.1, {lx}.0 quad_perm:[0,0,0,0] row_mask:0xf bank_mask:0xf')
        if not safe:
            b(f'v_max3_u32 v{V_ML}, v{V_ML}, {lx}.0, {lx}.1')
        b(f'v_mul_f32 %ox0.0, %ox0.0, {lx}.1')
        for jd in (1, 2):
            b(f'v_mul_f32_dpp %ox0.0, %ox{jd}.0, {lx}.1 quad_perm:[0,1,2,3] row_mask:{hex(1 << jd)} bank_mask:0xf')
        b(f'{CVT} %ox0.0, %ox0.0, %ox0.0')
        o_wr.append(b(f'ds_write_b16 v{V_OE}, %ox0.0', prio=-100, after=wr_after))
        marks['w', 3] = o_wr[-1:]
        if step:
            b(f'v_add_u32 v{V_OE}, {step[2]}, v{V_OE}', prio=T1 + cfg['upd'][1])

    b.cur = T1 + A['s0']
    s_tile(0, None)
    for jq in range(3):
        b.cur = T1 + A['sm'][jq]
        softmax(jq)
        if jq < 2:
            b.cur = T1 + A['s'][jq]
            d = A['s_after'][jq]
            s_tile(jq + 1, [marks[jq][min(11, d + A['s_step'] * jk)] for jk in range(3)])
        b.cur = T1 + A['pv'][jq]
        pv(jq)
        b.cur = T1 + A['op'][jq]
        o_post(jq)
        if jq == A['x_after'] // 12:
            b.cur = T1 + A['x']
            extra_pv([marks[jq][A['x_after'] % 12]])

    return o_wr, marks


def build_loop(ctx, cfg, safe, label):
    b = Block(ctx, 'loop', lds_lat=cfg['lds_lat'])
    b.gap_st, b.gap_dma, b.slack = cfg['gap_st'], cfg['gap_dma'], cfg['slack']
    b.cyclic, b.limit, b.sticky, b.ends = True, cfg['limit'], cfg['sticky'], cfg['ends']
    b.share = cfg['share']
    b.costs = (4 * cfg['bar_cost'], 4 * cfg['vm_cost'], 4 * cfg['queue'])
    c = ctx
    LEAD = cfg['lead']
    for j in range(3):
        for jd in range(3):
            c.new(f'y{j}{jd}', 4)

    b.cur = 0
    point(b, S_SRDO, S_PO, S_OFF + 4, f's_cmp_ge_u32 s{S_IT}, 2')
    st0 = c.new('st0', 4)
    st1 = c.new('st1', 4)
    b(f'ds_read_b128 {st0}, v{V_OR} offset:{L_STAT}', prio=-600)
    stat_rd = b(f'ds_read_b128 {st1}, v{V_OR} offset:{L_STAT + 1024}', prio=-600)
    lnr = c.new('lnr', 4)
    lp = -900 if cfg['ln_at'] < 0 else 6 * cfg['ln_at'] - 0.6
    b(f'{M32} {lnr}, {vr(V_SEL, 4)}, {st0}, 0', prio=lp)
    b(f'{M32} {lnr}, {vr(V_SEL, 4)}, {st1}, {lnr}', prio=lp)
    b.cur = cfg['ln_prio'][0]
    rs = [ln_scale(b, lnr, j, f'rs{j}') for j in range(3)]
    stores = []
    for j in range(3):
        b.cur = cfg['ln_prio'][j]
        stores += ln_finish(b, lambda jc: f'y{j}{jc}', rs[j], f'v{V_ST4 + j}', f'v{V_ST2 + j}', '0', f'yp{j}', cfg['st_flags'])

    mf = []
    front_part(b, cfg, safe, mf)
    xrd = later_tiles(b, cfg, safe, mf)
    T1 = b.cur

    wv = b('s_waitcnt vmcnt(0)', after=[mf[len(mf) - max(1, cfg['m_at'])]], tag='vmw')
    skew = 0 if safe else cfg['skew']
    clw = [] if safe else [b(f'ds_write_b16 v{V_PW}, v{V_CL} offset:512', after=[wv], prio=-700, tag='clw')]
    barm = barrier(b, [wv] + clw + xrd, skew)[-1]
    b(f's_sub_u32 s{S_U + 5}, s{S_SL + 1}, s{S_SL}')
    for q, st in enumerate((QKE_S, VE_S, 16)):
        b(f's_mul_i32 s{S_DLT + q}, s{S_U + 5}, {st}')
    clr = advance(b, cfg, T1, barm, 'repeat' if safe else 'new')
    o_wr, _ = attention(b, cfg, safe, T1, mf, step=[f's{S_DLT + q}' for q in range(3)])

    out_mf = []
    ord_ = []
    b.cur = T1 + 100
    OL = cfg['o_lead']
    for j in range(3):
        ps, jcs, flip = out_order(j)
        for n, p in enumerate(ps):
            t = c.new(f'of{j}{p}', 4)
            aft = out_mf[min(len(out_mf) + n - OL, len(out_mf) - 1)] if j else mf[min(len(mf) - cfg['o_first'] + n, len(mf) - 1)]
            ord_.append(b(f'ds_read_b128 {t}, v{V_OR} offset:{L_O + j * 6144 + p * 1024}', after=[aft], prio=-450))
        for jc in jcs:
            out_mf += proj_chain(b, f'y{j}{jc}', WO, lambda p: f'%of{j}{p}', jc, False, step=0.01, flip=flip)
        t = b.cur
        b.cur = T1 + cfg['ss_prio'][j]
        sumsq(b, f'ssy{j}', [f'y{j}{jc}' for jc in jcs], f's{S_EPSY}')
        b.cur = t
    if cfg['m_at'] <= 0:
        wv.after.append(out_mf[-cfg['m_at']])
    b.cur = T1 + cfg['ss_prio'][2]
    sp = c.new('sp', 2)
    b(f'{CVT} {sp}.0, %ssy0, %ssy1')
    b(f'{CVT} {sp}.1, %ssy2, %ssy2')
    o_wr.extend(lds_write(b, V_OT, sp, 2, L_STAT, cfg['ow']))
    for r in (V_OR, V_OW, V_OT):
        b(f'v_xor_b32 v{r}, {TOG}, v{r}', prio=T1 + cfg['upd'][2])

    b.cur = T1 + 150
    H = cfg['h_lead']
    rd, ch = head_part(b, cfg, safe, after=[out_mf[min(len(out_mf) - 1, len(out_mf) - H + s)] for s in range(6)])
    for r in rd:
        r.after.append(barm)
    b(f's_add_u32 s{S_IT}, s{S_IT}, 1')
    b(f's_cmp_lt_u32 s{S_IT}, s{S_LAST}')
    barrier(b, o_wr + ord_ + [stat_rd] + clr, skew)
    ch[-1].after += [i for i in b.ins if i is not ch[-1]]
    b(f's_cbranch_scc1 {label}', after=list(b.ins), prio=2e6)
    b.entry = [(ch[-1 - k], 1 + 2 * k) for k in range(4)]
    return b


def place_loop(cfg, safe, pins, tries=300):
    ctx = Ctx()
    b = build_loop(ctx, cfg, safe, 'L_LOOP')
    seq = b.schedule()
    assert not b.open_reads
    _, entry = occupancy(ctx, seq, True)
    names = sorted({k[1] for k in entry})
    if pins:
        taken = {base + e for n, (size, (bank, base)) in pins.items() for e in range(size)}
        for n in names:
            if n in pins:
                ctx.phys[n] = pins[n][1]
        free = [r for r in POOL if r not in taken]
        for n in sorted((n for n in names if n not in pins), key=lambda n: -ctx.size[n]):
            sz = ctx.size[n]
            base = next(r for r in free if (sz == 1 or (r + sz - POOL[0]) % 4 == 0) and all(r + e in free for e in range(sz)))
            ctx.phys[n] = ('v', base)
            free = [r for r in free if not base <= r < base + sz]
    mp, _, entry = allocate(ctx, seq, POOL, True, tries=tries)
    return ctx, seq, b, mp, entry


CFG = dict(share=0, norm_at=[-1, -1, -1], ln_at=-1, ends=0, sticky=0, exm=0, at_flags=' sc0 sc1', at_prio=-390, skew=1, bar_cost=0, vm_cost=0, queue=7, limit=0, tail32=0, ow=0, lds_lat=112, slack=0, gap_st=272, gap_dma=80, lead=10, hm=42, cut=26, head_prio=60, ln_prio=[40, 80, 130],
           m_at=40, e_lead=30, ve_lead=12, st_flags=' nt', ld_flags=' nt', o_lead=10, o_first=10, h_lead=12,
           ss_prio=[25, 45, 62], upd=[50, 200, 300],
           att=dict(ex=[-10, -10, -10], tx=0, s0=-5, sm=[1, 21, 41], s=[2, 22], pv=[3, 23, 43], op=[20, 40, 60],
                    s_after=[3, 3], s_step=2, x_after=7, x=10, xo=10))


def report(cfg, safe, noise=None, dump=None):
    from collections import Counter
    ctx = Ctx()
    b = build_loop(ctx, cfg, safe, 'L')
    out = b.schedule(noise=noise)
    busy = sum((4 if '16x16x16' in i.op else 8) if i.kind == 'mfma' else i.dur for i in out if i.kind in ('mfma', 'valu') + MEM)
    print('safe', safe, 'cycles', b.cycles, 'stall', b.stall, 'chain', chain_count(out), 'busy', busy, dict(Counter(i.kind for i in out)))
    press = None
    try:
        mp, press, entry = allocate(ctx, out, POOL, True)
        print(' max pressure', mp, 'of', len(POOL))
    except RuntimeError as e:
        print(e)
    if dump:
        with open(dump, 'w') as f:
            for p, i in enumerate(out):
                f.write(f'{i.time:5d} {press[2*p] if press else 0:3d} {i.text} {i.tag}\n')


if __name__ == '__main__':
    report(CFG, False, dump='sched.txt')
    report(CFG, True)
```

```python
from ir import *

M32 = 'v_mfma_f32_16x16x32_bf16'
M16 = 'v_mfma_f32_16x16x16_bf16'
CVT = 'v_cvt_pk_bf16_f32'
H32 = 'v_mfma_f32_16x16x32_f16'
H16 = 'v_mfma_f32_16x16x16_f16'
CVH = 'v_cvt_pk_f16_f32'

TOG = 0x10000
L_O = 0x0000
L_STAT = 0x4800
L_X = 0x5000
NFIX = 20
NSLOT = 28
VE_S = 272
QKE_S = 336
VE_H = NSLOT * VE_S
QKE_H = NSLOT * QKE_S
L_VE = 0x9800
L_PE = L_VE + 3 * VE_H
L_MEAN = L_PE + 1024
L_PART = (L_STAT, L_STAT + 1024, L_MEAN + 768)
L_ZERO = L_PART[2] + 1024
L_QKE = 0x19800
L_VE3 = L_QKE + 4 * QKE_H
L_OE = L_VE3 + VE_H
L_DUM = L_OE + 12288
L_OED = L_DUM + 1280
L_END = L_OED + 512
L_XE = TOG + L_X
L_TAB = L_XE + 12288
assert L_ZERO + 512 <= 0x10000 and L_END <= 163840
LDS_BYTES = 163840

_next = [0]


def _v(n, al=1):
    while _next[0] % al:
        _next[0] += 1
    b = _next[0]
    _next[0] += n
    return b


V_LANE = _v(1)
V_XA0 = V_LANE
V_XA1 = _v(1)
V_OR = _v(1)
V_OW = _v(1)
V_OT = _v(1)
V_QKE = _v(1)
V_VE = _v(1)
V_OE = _v(1)
V_PW = _v(1)
V_PR = _v(1)
V_DMA = _v(5)
V_ST4 = _v(3)
V_ST2 = _v(3)
V_FREE = _v(1)
V_BEX = _v(6, 2)
V_ML = V_BEX + 3
V_ONES = _v(4, 2)
V_SEL = _v(4, 2)
V_P1 = _v(4, 2)
V_SELH = _v(4, 2)
V_MX = _v(1)
V_CL = _v(1)
V_BIAS = _v(36, 2)
V_WO = _v(32, 2)
POOL0 = _v(0, 2)
POOL = list(range(POOL0, 256))


def vr(b, n=1):
    return f'v{b}' if n == 1 else f'v[{b}:{b + n - 1}]'


def WQ(jd, s): return f'a[{(jd * 6 + s) * 4}:{(jd * 6 + s) * 4 + 3}]'
def WK(jd, s): return f'a[{72 + (jd * 6 + s) * 4}:{72 + (jd * 6 + s) * 4 + 3}]'
def WV(jd, s): return f'a[{144 + (jd * 6 + s) * 4}:{144 + (jd * 6 + s) * 4 + 3}]'


def wo_reg(jc, p):
    f = jc * 6 + p
    return ('a', 216 + 4 * f) if f < 10 else ('v', V_WO + 4 * (f - 10))


def WO(jc, p):
    bank, b = wo_reg(jc, p)
    return f'{bank}[{b}:{b + 3}]'


def BIAS(jq, jk): return vr(V_BIAS + (jq * 3 + jk) * 4, 4)


S_SRDX = 8
S_SRDO = 12
S_H = 16
S_N = 17
S_IT = 18
S_J = 19
S_DJ = 20
S_DOFF = 21
S_DCAR = 22
S_OFF = 23
S_M0A = 28
S_M0B = 29
S_M0T = 30
S_C = 31
S_EPSQ = 32
S_EPSY = 33
S_T0 = 34
S_T1 = 35
S_NB = 36
S_J0 = 38
S_LAST = 45
S_FORCE = 44
S_PO = 40
S_PD = 42
S_PX = 60
S_POOL = 62
S_MASK = 70
S_SRDC = 64
S_JP = 68
S_OFFP = 69
S_SL = 71
S_DLT = 74
S_U = 77
S_REM = 100
S_BEE = 39
S_TOK48 = 7
NBYTES = 100270464


def xread(b, name, j, s, base, addr=None, **kw):
    t = b.ctx.new(name, 4)
    a0, a1 = addr or (f'v{V_XA0}', f'v{V_XA1}')
    return b(f'ds_read_b128 {t}, {a1 if s & 1 else a0} offset:{base + j * 6144 + (s >> 1) * 128}', **kw)


SNAKE = [1]


def proj_chain(b, acc, w, xf, jd, x_is_a, step=1.0, snake=True, flip=0):
    t = b.ctx.new(acc, 4)
    out = []
    back = snake and SNAKE[0] and (jd + (w is WQ) + flip) & 1
    for n, s in enumerate(range(5, -1, -1) if back else range(6)):
        a_, b_ = (xf(s), w(jd, s)) if x_is_a else (w(jd, s), xf(s))
        out.append(b(f'{M32} {t}, {a_}, {b_}, {t if n else 0}'))
        b.cur += step
    return out


def sumsq(b, ss, accs, init):
    t = b.ctx.new(ss, 1)
    first = True
    for a in accs:
        for r in range(4):
            if first:
                if init is None:
                    b(f'v_mul_f32 {t}, %{a}.{r}, %{a}.{r}')
                else:
                    b(f'v_fma_f32 {t}, %{a}.{r}, %{a}.{r}, {init}')
                first = False
            else:
                b(f'v_fmac_f32 {t}, %{a}.{r}, %{a}.{r}')


def scale_pack(b, acc, scale, dst, off, cvt=CVT):
    last = None
    for r in (0, 2):
        if scale is not None:
            b(f'v_mul_f32 %{acc}.{r}, {scale}, %{acc}.{r}')
            b(f'v_mul_f32 %{acc}.{r + 1}, {scale}, %{acc}.{r + 1}')
        d = dst(off + r // 2)
        last = b(f'{cvt} {d}, %{acc}.{r}, %{acc}.{r + 1}')
    return last


def qk_norm(b, j, sfx=''):
    c = b.ctx
    nr = c.new(f'nr{j}{sfx}', 4)
    b(f'{CVT} v{V_P1}, %ssq{j}{sfx}, %ssk{j}{sfx}')
    m = b(f'{M32} {nr}, {vr(V_SEL, 4)}, {vr(V_P1, 4)}, 0', prio=-1000)
    b(f'v_rsq_f32 {nr}.1, {nr}.1')
    b(f'v_rsq_f32 {nr}.0, {nr}.0')
    b(f'v_mul_f32 {nr}.0, s{S_C}, {nr}.0')
    return m


def qk_dst(c, j, sfx, nm, jd):
    for t in ('qp', 'kp'):
        c.new(f'{t}{j}{sfx}', 4)
    c.new(f'tp{j}{sfx}', 6)
    if jd < 2:
        return f'%{nm}p{j}{sfx}', 2 * jd
    return f'%tp{j}{sfx}', 4 if nm == 'k' else 2


def qk_pack(b, j, sfx=''):
    for nm, r in (('k', 1), ('q', 0)):
        for jd in range(3):
            t, off = qk_dst(b.ctx, j, sfx, nm, jd)
            scale_pack(b, f'{nm}a{j}{jd}{sfx}', f'%nr{j}{sfx}.{r}', lambda e: f'{t}.{e}', off, CVH)


def half_regs(c, j, nm):
    out = []
    for jd in range(3):
        t, off = qk_dst(c, j, '', nm, jd)
        out += [f'{t}.{off}', f'{t}.{off + 1}']
    return out


def half_raw(b, j, nm):
    ss = b.ctx.new(f'nb{j}', 4) + ('.1' if nm == 'k' else '.0')
    for e, x in enumerate(half_regs(b.ctx, j, nm)):
        b(f'{CVH} {x}, %{nm}a{j}{e // 2}.{2 * (e & 1)}, %{nm}a{j}{e // 2}.{2 * (e & 1) + 1}')
        b(f'v_pk_fma_f16 {ss}, {x}, {x}, {ss}' if e else f'v_pk_mul_f16 {ss}, {x}, {x}')


def half_dot(b, j, dst, xs, ys):
    d = f'%nb{j}.{dst}'
    for e, (x, y) in enumerate(zip(xs, ys)):
        b(f'v_pk_fma_f16 {d}, {x}, {y}, {d}' if e else f'v_pk_mul_f16 {d}, {x}, {y}')


def half_extra(b, j, nm, skip=False):
    if skip:
        e = int(nm == 'k')
        b(f'v_mov_b32 %nb{j}.{2 + e}, %nb{j}.{e}')
        return
    for t in ('ea', 'eb', 'ec'):
        b.ctx.new(t, 4)
    main, tail = ('%eb', 2) if nm == 'k' else ('%ea', 0)
    half_dot(b, j, 3 if nm == 'k' else 2, half_regs(b.ctx, j, nm), [f'{main}.{e}' for e in range(4)] + [f'%ec.{tail}', f'%ec.{tail + 1}'])


def half_norm(b, j, extra=False, prio=-1000):
    nr, rr = b.ctx.new(f'nr{j}', 4), b.ctx.new(f'rr{j}', 2)
    b(f'{H32} {nr}, {vr(V_SELH, 4)}, %nb{j}, 0', prio=prio)
    b(f'v_rsq_f32 {nr}.0, {nr}.0')
    b(f'v_rsq_f32 {nr}.1, {nr}.1')
    b(f'v_mul_f32 {rr}.0, s{S_C}, {nr}.0')
    b(f'{CVH} {rr}.1, {rr}.0, {nr}.1')
    if extra:
        b.ctx.new('tx', 1)
        b(f'v_fma_f32 {nr}.2, {nr}.2, {rr}.0, v{V_BEX + 2 * j}')
        b(f'v_fmac_f32_dpp %tx, {nr}.3, {nr}.1 quad_perm:[0,1,2,3] row_mask:{hex(1 << j)} bank_mask:0xf')


def half_scale(b, j):
    for nm, sel in (('k', 1), ('q', 0)):
        for x in half_regs(b.ctx, j, nm):
            b(f'v_pk_mul_f16 {x}, {x}, %rr{j}.1 op_sel:[0,{sel}] op_sel_hi:[1,{sel}]')


def half_check(b, j):
    b(f'v_max3_u32 v{V_MX}, v{V_MX}, %nr{j}.0, %nr{j}.1')


def group_max(b, m, tmp):
    for op in ('v_permlane32_swap_b32', 'v_permlane16_swap_b32'):
        b(f'v_mov_b32 {tmp}, {m}')
        b(f'{op} {m}, {tmp}')
        b(f'v_max_f32 {m}, {m}, {tmp}')


def ln_scale(b, red, r, name):
    t = b.ctx.new(name, 1)
    b(f'v_mul_f32 {t}, 0x3baaaaab, {red}.{r}')
    b(f'v_rsq_f32 {t}, {t}')
    return t


def ln_finish(b, y, rs, va4, va2, soff, name, flags='', R=S_SRDO):
    c = b.ctx
    p0 = c.new(name + 'a', 4)
    p1 = c.new(name + 'b', 2)
    for jc in range(2):
        scale_pack(b, y(jc), rs, lambda e: f'{p0}.{e}', 2 * jc)
    s0 = b(f'buffer_store_dwordx4 {p0}, {va4}, s[{R}:{R + 3}], {soff} offen{flags}')
    scale_pack(b, y(2), rs, lambda e: f'{p1}.{e}', 0)
    s1 = b(f'buffer_store_dwordx2 {p1}, {va2}, s[{R}:{R + 3}], {soff} offen{flags}')
    return s0, s1


def point(b, srd, ptr, off, cond=None):
    b(f's_add_u32 s{srd}, s{ptr}, s{off}')
    b(f's_addc_u32 s{srd + 1}, s{ptr + 1}, 0')
    b(f's_sub_u32 s{srd + 2}, s{S_NB}, s{off}')
    if cond:
        b(cond)
        b(f's_cselect_b32 s{srd + 2}, s{srd + 2}, 0')


def out_order(j):
    return (range(5, -1, -1), (2, 1, 0), 1) if j == 1 else (range(6), (0, 1, 2), 0)
```

```python
import sys, json
sys.path.insert(0, 'gen')
from loop import *
cfg = dict(CFG, **json.load(open(sys.argv[1])))
c = Ctx(); b = build_loop(c, cfg, False, 'L'); seq = b.schedule()
prev = None; out = []
for i in seq:
    if i.kind == 'mfma':
        if prev is not None:
            ch = list(prev.defs) == list(i.C)
            if not (i.time - prev.time == 16 if ch else prev.A == i.A or prev.B == i.B): out.append(f'{prev.defs[0][1]}>{i.defs[0][1]}' + ('(gap)' if ch else ''))
        prev = i
print(b.cycles, len(out), {k: cfg[k] for k in ('share', 'norm_at', 'ln_at', 'hm', 'cut')}, ' '.join(out))
```
